```python
import torch

def _softmax(x, axis=-1):
    return torch.softmax(x, dim=axis)
def _gelu(x):
    return torch.nn.functional.gelu(x, approximate="tanh")
def _silu(x):
    return torch.nn.functional.silu(x)
def _sigmoid(x):
    return torch.sigmoid(x)
def _layernorm(x, axis=-1, eps=1e-5):
    m = x.mean(dim=axis, keepdim=True)
    v = x.var(dim=axis, keepdim=True, unbiased=False)
    return (x - m) / torch.sqrt(v + eps)
def _scatter_add(tgt, idx, src, axis=0):
    return tgt.clone().index_add_(axis, idx, src)
def _segment_sum(src, seg, n):
    out = torch.zeros((n,) + src.shape[1:], dtype=src.dtype)
    return out.index_add_(0, seg, src)
def _pad(x, pw):
    flat = tuple(v for pair in reversed(pw) for v in pair)
    return torch.nn.functional.pad(x, flat)

kernel_name = 'sequential_preLN__grouped_kv_mqa__geglu_ffn__prompt'

def setup_inputs():

    _w = (lambda a: (lambda t: t.to(torch.bfloat16) if t.is_floating_point() else t)(torch.as_tensor(a)))
    def _A_setup():
        B, S, D, H = 1, 2048, 512, 32
        Dh = D // H
        return {
            "x": _w((lambda *s: torch.randn(*s, dtype=torch.bfloat16) * 0.05)(B, S, D)),
            "wq": _w((lambda *s: torch.randn(*s, dtype=torch.bfloat16) * 0.05)(D, H * Dh)),
            "wk": _w((lambda *s: torch.randn(*s, dtype=torch.bfloat16) * 0.05)(D, Dh)),
            "wv": _w((lambda *s: torch.randn(*s, dtype=torch.bfloat16) * 0.05)(D, Dh)),
            "wo": _w((lambda *s: torch.randn(*s, dtype=torch.bfloat16) * 0.05)(H * Dh, D)),
        }
    _A_in = _A_setup()

    def _B_setup():
        B, S, D, F = 1, 2048, 512, 1792
        return {
            "x": _w((lambda *s: torch.randn(*s, dtype=torch.bfloat16) * 0.05)(B, S, D)),
            "w_gate": _w((lambda *s: torch.randn(*s, dtype=torch.bfloat16) * 0.05)(D, F)),
            "w_up": _w((lambda *s: torch.randn(*s, dtype=torch.bfloat16) * 0.05)(D, F)),
            "w_down": _w((lambda *s: torch.randn(*s, dtype=torch.bfloat16) * 0.05)(F, D)),
        }
    _B_in = _B_setup()

    return {
        "A_x": _A_in["x"],
        "A_wq": _A_in["wq"],
        "A_wk": _A_in["wk"],
        "A_wv": _A_in["wv"],
        "A_wo": _A_in["wo"],
        "B_x": _B_in["x"],
        "B_w_gate": _B_in["w_gate"],
        "B_w_up": _B_in["w_up"],
        "B_w_down": _B_in["w_down"],
    }

def reference(A_x, A_wq, A_wk, A_wv, A_wo, B_x, B_w_gate, B_w_up, B_w_down):
    def _A_ref(x, wq, wk, wv, wo):
        B, S, D = x.shape
        H = 32
        Dh = D // H
        q = (lambda x, *d: x.permute(*d))((x @ wq).reshape(B, S, H, Dh), 0, 2, 1, 3)
        k = x @ wk
        v = x @ wv
        scores = torch.einsum("bhqd,bkd->bhqk", q, k) * (Dh ** -0.5)
        p = _softmax(scores, axis=-1)
        o = torch.einsum("bhqk,bkd->bhqd", p, v)
        return (lambda x, *d: x.permute(*d))(o, 0, 2, 1, 3).reshape(B, S, H * Dh) @ wo

    def _B_ref(x, w_gate, w_up, w_down):
        return (_gelu(x @ w_gate) * (x @ w_up)) @ w_down

    x = A_x
    h = x + _A_ref(_layernorm(x, axis=-1), A_wq, A_wk, A_wv, A_wo)
    h2 = h + _B_ref(_layernorm(h, axis=-1), B_w_gate, B_w_up, B_w_down)
    return h2
```

```python
import re

REG_RE = re.compile(r'^(-|abs\()?([vas])(\d+)\)?$')
RNG_RE = re.compile(r'^(-)?([vas])\[(\d+):(\d+)\]$')

def regs_of(tok):
    tok = tok.strip()
    m = REG_RE.match(tok)
    if m: return {(m.group(2), int(m.group(3)))}
    m = RNG_RE.match(tok)
    if m: return {(m.group(2), i) for i in range(int(m.group(3)), int(m.group(4)) + 1)}
    if tok in ('vcc', 'vcc_lo', 'vcc_hi'): return {('vcc', 0)}
    if tok in ('exec', 'exec_lo', 'exec_hi'): return {('exec', 0)}
    if tok == 'm0': return {('m0', 0)}
    return set()

TRANS = ('v_exp_', 'v_log_', 'v_rcp_', 'v_rsq_', 'v_sqrt_', 'v_sin_', 'v_cos_')
NO_DST_S = ('s_cmp', 's_waitcnt', 's_barrier', 's_branch', 's_cbranch', 's_nop', 's_sleep', 's_setprio', 's_endpgm', 's_bitcmp')

class Ins:
    __slots__ = ('text', 'op', 'dst', 'src', 'srcC', 'srcAB', 'kind', 'passes', 'tag', 'ws', 'label', 'target', 'dpp', 'wide', 'data')
    def __init__(self, text, tag=None):
        self.text = text; self.tag = tag
        self.dst = set(); self.src = set(); self.srcC = set(); self.srcAB = set(); self.data = set()
        self.kind = 'other'; self.passes = 0; self.ws = 1; self.label = None; self.target = None
        self.dpp = False; self.wide = False
        t = text.split(';')[0].strip()
        if t.endswith(':'):
            self.kind = 'label'; self.label = t[:-1]; self.ws = 0; self.op = ''; return
        if t == '' or t.startswith('.'):
            self.kind = 'dir'; self.ws = 0; self.op = ''; return
        parts = t.split(None, 1)
        op = self.op = parts[0]
        rest = parts[1] if len(parts) > 1 else ''
        ops = []; cur = ''; depth = 0
        for ch in rest:
            if ch == '[': depth += 1
            if ch == ']': depth -= 1
            if ch == ',' and depth == 0: ops.append(cur.strip()); cur = ''
            else: cur += ch
        if cur.strip(): ops.append(cur.strip())
        mods = ''
        if ops:
            l = ops[-1].split(None, 1)
            ops[-1] = l[0]; mods = l[1] if len(l) > 1 else ''
        R = [regs_of(o) for o in ops]
        U = lambda L: set().union(*L) if L else set()
        if op.startswith('v_mfma') or op.startswith('v_smfmac'):
            self.kind = 'mfma'
            self.passes = 8 if '32x32' in op else 4
            self.dst = R[0]; self.srcAB = R[1] | R[2]; self.srcC = R[3]; self.src = self.srcAB | self.srcC
        elif op.startswith('v_'):
            self.kind = 'valu'
            if op.startswith(TRANS): self.kind = 'trans'
            if op.startswith('v_dot'): self.kind = 'dot'
            self.dpp = ('row_' in mods or 'quad_perm' in mods or '_dpp' in op)
            if op.startswith('v_permlane') and 'swap' in op:
                self.kind = 'perm'; self.dst = R[0] | R[1]; self.src = R[0] | R[1]
            elif op.startswith('v_cmp'):
                self.dst = R[0]; self.src = U(R[1:])
            elif op.startswith(('v_add_co', 'v_sub_co', 'v_addc_co', 'v_subb_co')):
                self.dst = R[0] | R[1]; self.src = U(R[2:])
            elif op.startswith(('v_fmac', 'v_dot2c', 'v_pk_fmac')):
                self.dst = R[0]; self.src = U(R)
            else:
                self.dst = R[0]; self.src = U(R[1:])
                if self.dpp: self.src |= R[0]
            if op.startswith('v_dot'):
                self.srcC = R[0] if op.startswith('v_dot2c') else R[3]
                self.srcAB = R[1] | R[2]
            if op.startswith(('v_readfirstlane', 'v_readlane')): self.kind = 'rdlane'
        elif op.startswith('ds_'):
            self.kind = 'ds'
            if op.startswith('ds_read') or '_rtn' in op or op.startswith(('ds_bpermute', 'ds_permute', 'ds_swizzle')):
                self.dst = R[0]; self.src = U(R[1:])
            else:
                self.src = U(R)
            if 'addtid' in op: self.src |= {('m0', 0)}
        elif op.startswith(('buffer_', 'global_')):
            self.kind = 'vmem'
            if op.startswith(('buffer_inv', 'buffer_wbl2')):
                pass
            elif ' lds' in (' ' + mods) or 'load_lds' in op:
                self.src = U(R) | {('m0', 0)}
            elif '_load' in op:
                self.dst = R[0]; self.src = U(R[1:])
            elif 'atomic' in op and 'sc0' in mods:
                self.dst = R[0]; self.src = U(R)
            else:
                self.src = U(R)
                if 'x4' in op or 'x3' in op:
                    self.wide = True
                    self.data = R[0] if op.startswith('buffer_') else R[1]
        elif op.startswith('s_'):
            self.kind = 'salu'
            if op.startswith(('s_load', 's_memtime', 's_memrealtime', 's_buffer_load')):
                self.kind = 'smem'; self.dst = R[0]; self.src = U(R[1:])
            elif op == 's_nop':
                self.ws = int(ops[0], 0) + 1
            elif op.startswith(('s_branch', 's_cbranch')):
                self.kind = 'branch'; self.target = ops[0]
            elif op.startswith(NO_DST_S):
                self.src = U(R)
            else:
                self.dst = R[0]; self.src = U(R[1:])
                if 'saveexec' in op: self.dst |= {('exec', 0)}

VALU_KINDS = ('valu', 'trans', 'dot', 'perm', 'rdlane')

def need(p, c):
    n = 0
    pv = p.kind in VALU_KINDS; cv = c.kind in VALU_KINDS
    vd = {r for r in p.dst if r[0] in 'va'}
    sd = {r for r in p.dst if r[0] in ('s', 'vcc')}
    if pv:
        if c.kind == 'mfma' and vd & c.src: n = max(n, 2 if p.kind != 'dot' else 3)
        if p.kind == 'trans' and cv and c.kind != 'trans' and vd & c.src: n = max(n, 1)
        if c.kind == 'perm' and vd & c.src: n = max(n, 2)
        if cv and c.dpp and vd & c.src: n = max(n, 2)
        if c.kind == 'rdlane' and vd & c.src: n = max(n, 1)
        if sd:
            if cv and sd & c.src: n = max(n, 4 if c.kind == 'rdlane' else 2)
            if c.kind == 'vmem' and sd & c.src: n = max(n, 5)
            if c.kind in ('salu', 'smem') and sd & c.src: n = max(n, 1)
        if 'sdwa' in p.op and cv and vd & (c.src | c.dst): n = max(n, 1)
        if p.kind == 'dot':
            if c.op == p.op:
                if vd & c.srcAB: n = max(n, 3)
            elif vd & (c.src | c.dst): n = max(n, 3)
        if ('exec', 0) in p.dst: n = max(n, 5)
    if p.kind == 'mfma':
        big = p.passes == 8
        if c.kind == 'mfma':
            if p.dst & c.srcAB: n = max(n, 12 if big else 8)
            if p.dst & c.srcC:
                if not (p.dst == c.srcC and p.passes == c.passes): n = max(n, 10 if big else 6)
            elif p.dst & c.dst: n = max(n, 10 if big else 6) if p.passes != c.passes else n
        elif cv or c.kind in ('vmem', 'ds'):
            if p.dst & (c.src | c.dst): n = max(n, 12 if big else 8)
            if cv and p.srcC & c.dst: n = max(n, 7 if big else 3)
    if p.kind == 'salu' and ('m0', 0) in p.dst and c.kind in ('vmem', 'ds') and ('m0', 0) in c.src: n = max(n, 1)
    if p.kind == 'vmem' and p.wide and p.data & c.dst: n = max(n, 2)
    return n

class Code:
    def __init__(self): self.items = []
    def I(self, text, tag=None):
        for line in text.strip('\n').split('\n'):
            if line.strip(): self.items.append(Ins(line.strip(), tag))
        return self
    def wv(self, tag): self.items.append(('wv', tag)); return self
    def wl(self, tag): self.items.append(('wl', tag)); return self
    def wv0(self): self.items.append(('wv0',)); return self
    def wl0(self): self.items.append(('wl0',)); return self
    def begin(self, name): self.items.append(('begin', name)); return self
    def end(self): self.items.append(('end',)); return self
    def add(self, other): self.items.extend(other.items if isinstance(other, Code) else other); return self
    def cm(self, text): self.items.append(Ins('; ' + text)); return self

def interleave(main_groups, side_items, start=0, stop=None):
    n = len(main_groups); stop = n if stop is None else stop
    out = []; k = 0; m = len(side_items); span = stop - start
    for i, gq in enumerate(main_groups):
        out.extend(gq)
        if start <= i < stop:
            tgt = ((i - start + 1) * m + span - 1) // span
            while k < min(tgt, m):
                out.extend(side_items[k]); k += 1
    while k < m:
        out.extend(side_items[k]); k += 1
    return out

def resolve(items):
    out = []
    class Q:
        def __init__(s): s.ops = []; s.done = 0
    vq, lq = Q(), Q()
    stack = []; saved = []; uid = 0
    def visible(path): return path == tuple(stack[:len(path)])
    def do_wait(q, tag, name, mx):
        idx = None
        for i in range(len(q.ops) - 1, -1, -1):
            if q.ops[i][0] == tag and visible(q.ops[i][1]): idx = i; break
        assert idx is not None, f"wait on unknown tag {tag}"
        if idx < q.done: return
        n = sum(1 for o in q.ops[idx + 1:] if visible(o[1]))
        n = min(n, mx)
        out.append(Ins(f's_waitcnt {name}({n})'))
        q.done = idx + 1
    for it in items:
        if isinstance(it, Ins):
            out.append(it)
            if it.kind == 'vmem': vq.ops.append((it.tag, tuple(stack)))
            elif it.kind == 'ds': lq.ops.append((it.tag, tuple(stack)))
        elif it[0] == 'wv': do_wait(vq, it[1], 'vmcnt', 63)
        elif it[0] == 'wl': do_wait(lq, it[1], 'lgkmcnt', 15)
        elif it[0] == 'wv0': out.append(Ins('s_waitcnt vmcnt(0)')); vq.done = len(vq.ops)
        elif it[0] == 'wl0': out.append(Ins('s_waitcnt lgkmcnt(0)')); lq.done = len(lq.ops)
        elif it[0] == 'begin':
            uid += 1; stack.append((it[1], uid)); saved.append((vq.done, lq.done))
        elif it[0] == 'end':
            stack.pop(); vq.done, lq.done = saved.pop()
    res = []
    for x in out:
        if res and x.op == 's_waitcnt' and res[-1].op == 's_waitcnt':
            a, b = res[-1].text, x.text
            d = {}
            for t in (a, b):
                for nm, v in re.findall(r'(\w+)\((\d+)\)', t): d[nm] = min(int(v), d.get(nm, 99))
            res[-1] = Ins('s_waitcnt ' + ' '.join(f'{k}({v})' for k, v in d.items()))
        else: res.append(x)
    return res

def pad(ins, verbose=False):
    MAXD = 14
    total = 0
    for _ in range(3):
        labels = {x.label: i for i, x in enumerate(ins) if x.kind == 'label'}
        br = {}
        for i, x in enumerate(ins):
            if x.kind == 'branch': br.setdefault(labels[x.target], []).append(i)
        add = {}
        def dist_extra(i): return add.get(i, 0)
        for i, c in enumerate(ins):
            if c.kind in ('label', 'dir', 'branch') or c.op in ('s_nop', 's_waitcnt', 's_barrier'): continue
            worst = 0
            st = [(i - 1, 0)]; seen = set()
            while st:
                j, d = st.pop()
                while j >= 0 and d < MAXD:
                    if (j, d) in seen: break
                    seen.add((j, d))
                    p = ins[j]
                    if p.kind == 'label':
                        for b in br.get(j, []): st.append((b, d))
                        if j > 0 and (ins[j - 1].op in ('s_branch', 's_endpgm')): break
                        j -= 1; continue
                    nd = need(p, c)
                    if nd - d > worst: worst = nd - d
                    d += p.ws + dist_extra(j)
                    j -= 1
                    if j >= 0 and ins[j].op in ('s_branch', 's_endpgm') : break
            if worst > 0: add[i] = worst
        if not add: break
        new = []
        for i, x in enumerate(ins):
            if i in add:
                if verbose: print('pad', add[i], 'before', x.text)
                new.append(Ins(f's_nop {add[i] - 1}')); total += add[i]
            new.append(x)
        ins = new
    return ins

def render(ins):
    o = []
    for x in ins:
        o.append(x.text if x.kind == 'label' else '  ' + x.text)
    return '\n'.join(o) + '\n'
```

```python
import sys, math, struct
sys.path.insert(0, 'gen')
from asmlib import *

NAME = 'sequential_preLN__grouped_kv_mqa__geglu_ffn__prompt'
DEBUG = '--debug' in sys.argv
STOP = None
for a in sys.argv:
    if a.startswith('--stop='): STOP = a[7:]

def f2u(x): return struct.unpack('<I', struct.pack('<f', x))[0]
def hx(x): return hex(x & 0xffffffff)

WS_EPOCH = 0
WS_KVF   = 0x1000
WS_FLG   = 0x10000
WS_DBG   = 0x80000
WS_K     = 0x100000
WS_V     = WS_K + 65536
KV_BYTES = 65536 + 128 * 528
WS_O     = 0x200000
WS_H     = 0x400000
WS_F     = 0x600000
WS_SIZE  = 0xD00000
PH_O, PH_H, PH_F = 0, 1, 2

L_X = 0; XS = 1040
L_WQ = 66560
L_WKV = 132096
L_ST1 = 148480
L_K = 0; L_V = 65536
L_STG = KV_BYTES
L_WO = 0; L_RED3 = 65536
L_H = 0; L_ST2 = 131072
LDS_SIZE = 163840

SRD_X, SRD_WQ, SRD_WKV, SRD_WO, SRD_WG, SRD_WU, SRD_WD, SRD_OUT, SRD_WS = [f's[{i}:{i+3}]' for i in range(8, 44, 4)]
sW, sG, sM, sTB, sHG, sTAG, sROW0, sTT0, sKIND, sWGP = 's48', 's49', 's50', 's51', 's52', 's53', 's54', 's55', 's56', 's57'
sT0, sT1, sT2, sT3, sT4 = 's58', 's59', 's60', 's61', 's62'
sONES = 's63'; sHI = 's64'
sC1, sC2 = 's65', 's66'
ST_BASE = 70
nstamp = [0]

c = Code()
I = c.I

def stamp(code):
    if not DEBUG: return
    k = nstamp[0]; nstamp[0] += 1
    code.I(f's_memtime s[68:69]')
    code.wl0()
    code.I(f's_mov_b32 s{ST_BASE + k}, s68')

lblc = [0]
def newlbl(p):
    lblc[0] += 1; return f'L_{p}_{lblc[0]}'

def poll(code, voff, nd, vtmp):
    l0 = newlbl('poll'); l1 = newlbl('pdone')
    op = {1: 'dword', 2: 'dwordx2', 4: 'dwordx4'}[nd]
    dst = f'v{vtmp}' if nd == 1 else f'v[{vtmp}:{vtmp+nd-1}]'
    code.I(f's_mov_b32 {sT4}, 0x40000')
    code.I(f'{l0}:')
    code.I(f'buffer_load_{op} {dst}, {voff}, {SRD_WS}, 0 offen sc1')
    code.wv0()
    for i in range(nd):
        code.I(f'v_xor_b32 v{vtmp+i}, {sTAG}, v{vtmp+i}')
    for i in range(1, nd):
        code.I(f'v_or_b32 v{vtmp}, v{vtmp}, v{vtmp+i}')
    code.I(f'''v_cmp_ne_u32 vcc, 0, v{vtmp}
s_cbranch_vccz {l1}
s_sub_u32 {sT4}, {sT4}, 1
s_cmp_eq_u32 {sT4}, 0
s_cbranch_scc1 {l1}
s_sleep 2
s_branch {l0}
{l1}:''')

def flag_store(code, soff_expr_reg, vt):
    code.I(f'''v_mov_b32 v{vt}, {sTAG}
v_mov_b32 v{vt+1}, {soff_expr_reg}
s_mov_b64 exec, 1
buffer_store_dword v{vt}, v{vt+1}, {SRD_WS}, 0 offen sc1
s_mov_b64 exec, -1''')

I(f'''s_cmp_ge_u32 s2, 256
s_cbranch_scc1 L_exit
s_load_dwordx16 s[72:87], s[0:1], 0
s_load_dwordx8 s[88:95], s[0:1], 64
v_lshrrev_b32 v2, 6, v0
v_and_b32 v0, 63, v0
v_readfirstlane_b32 {sW}, v2
v_lshlrev_b32 v1, 4, v0
s_and_b32 {sT0}, s2, 7
s_lshr_b32 {sT1}, s2, 3
s_lshr_b32 {sT2}, {sT1}, 4
s_lshl_b32 {sG}, {sT0}, 1
s_add_u32 {sG}, {sG}, {sT2}
s_and_b32 {sM}, {sT1}, 15
s_lshr_b32 {sTB}, {sM}, 3
s_and_b32 {sHG}, {sM}, 7
s_and_b32 {sKIND}, {sHG}, 1
s_lshl_b32 {sWGP}, {sG}, 4
s_add_u32 {sWGP}, {sWGP}, {sM}
s_lshl_b32 {sTT0}, {sG}, 2
s_lshl_b32 {sT0}, {sTB}, 1
s_add_u32 {sTT0}, {sTT0}, {sT0}
s_lshl_b32 {sROW0}, {sTT0}, 5
s_mov_b32 {sONES}, 0x3f803f80
s_mov_b32 {sHI}, 0xffff0000
''')
for i, sz in enumerate([2097152, 524288, 16384, 524288, 1835008, 1835008, 1835008, 2097152, WS_SIZE]):
    I(f's_mov_b32 s{8+4*i+2}, {hx(sz)}\ns_mov_b32 s{8+4*i+3}, 0x20000')
I('s_waitcnt lgkmcnt(0)')
I(f'''s_mov_b64 s[8:9], s[72:73]
s_mov_b64 s[40:41], s[94:95]
s_cmp_eq_u32 {sKIND}, 0
s_cselect_b64 s[16:17], s[76:77], s[78:79]
s_mov_b64 s[12:13], s[74:75]
s_mov_b64 s[20:21], s[80:81]
s_mov_b64 s[24:25], s[84:85]
s_mov_b64 s[28:29], s[86:87]
s_mov_b64 s[32:33], s[88:89]
s_mov_b64 s[36:37], s[90:91]
''')
stamp(c)
c.cm('P1: DMA x rows')
I(f'''s_lshl_b32 {sT0}, {sW}, 3
s_add_u32 {sT1}, {sROW0}, {sT0}
s_lshl_b32 {sT1}, {sT1}, 10
s_mul_i32 {sT2}, {sT0}, {XS}''')
for i in range(8):
    I(f's_add_u32 m0, {sT2}, {L_X + i * XS}')
    I(f'buffer_load_dwordx4 v1, {SRD_X}, {sT1} offen lds', tag='x')
    if i < 7: I(f's_add_u32 {sT1}, {sT1}, 1024')
c.cm('DMA wk/wv rows [64w,+64)')
I(f'''s_lshl_b32 {sT1}, {sW}, 11
s_add_u32 m0, {sT1}, {L_WKV}''')
I(f'buffer_load_dwordx4 v1, {SRD_WKV}, {sT1} offen lds', tag='wkv')
I(f'buffer_load_dwordx4 v1, {SRD_WKV}, {sT1} offen offset:1024 lds', tag='wkv')
c.cm('epoch')
I('v_mov_b32 v2, 0')
I(f'buffer_load_dword v31, v2, {SRD_WS}, 0 offen sc1', tag='epoch')
c.cm('DMA wq: rows 64w+8i+(l>>3), chunk (l&7)^(2f), f=((l>>4)&1)|((i&1)<<1)')
I(f'''v_lshrrev_b32 v2, 3, v0
v_lshlrev_b32 v2, 10, v2
v_and_b32 v3, 7, v0
v_lshrrev_b32 v4, 3, v0
v_and_b32 v4, 2, v4
v_xor_b32 v3, v3, v4
v_lshl_add_u32 v5, v3, 4, v2
v_xor_b32 v6, 64, v5
s_lshl_b32 {sT1}, {sW}, 16
s_lshl_b32 {sT2}, {sHG}, 7
s_add_u32 {sT1}, {sT1}, {sT2}
s_lshl_b32 {sT2}, {sW}, 13''')
for i in range(8):
    I(f's_add_u32 m0, {sT2}, {L_WQ + i * 1024}')
    I(f'buffer_load_dwordx4 v{5 + (i & 1)}, {SRD_WQ}, {sT1} offen lds', tag='wq')
    if i < 7: I(f's_add_u32 {sT1}, {sT1}, 8192')

c.cm('stats of own 8 rows: lane (r=l>>3, cc=l&7)')
I(f'''v_lshrrev_b32 v2, 3, v0
v_add_u32 v2, {sT0}, v2
v_mul_u32_u24 v3, {XS}, v2
v_and_b32 v4, 7, v0
v_lshl_add_u32 v3, v4, 4, v3
v_lshlrev_b32 v7, 3, v2
v_mov_b32 v8, {sONES}
v_mov_b32 v9, {sONES}
v_mov_b32 v10, {sONES}
v_mov_b32 v11, {sONES}
v_mov_b32 v12, 0
v_mov_b32 v13, 0
v_mov_b32 v14, 0
v_mov_b32 v15, 0''')
c.wv('x')
stamp(c)
for it in range(8):
    I(f'ds_read_b128 v[{32+4*it}:{35+4*it}], v3 offset:{L_X + it*128}', tag=f'st{it}')
for it in range(8):
    c.wl(f'st{it}')
    for j in range(4):
        r = 32 + 4 * it + j
        I(f'v_dot2c_f32_bf16 v{12 + (j & 1)}, v{r}, v8')
        I(f'v_dot2c_f32_bf16 v{14 + (j & 1)}, v{r}, v{r}')
I('''v_add_f32 v12, v12, v13
v_add_f32 v14, v14, v15''')
for m in ('quad_perm:[1,0,3,2]', 'quad_perm:[2,3,0,1]', 'row_half_mirror'):
    I(f'v_add_f32_dpp v12, v12, v12 {m} row_mask:0xf bank_mask:0xf')
    I(f'v_add_f32_dpp v14, v14, v14 {m} row_mask:0xf bank_mask:0xf')
def stats_fin(code, s1, s2, mu, rs):
    code.I(f'''v_mul_f32 v{mu}, {hx(f2u(1/512))}, v{s1}
v_mul_f32 v{s2}, {hx(f2u(1/512))}, v{s2}
v_fma_f32 v{s2}, -v{mu}, v{mu}, v{s2}
v_max_f32 v{s2}, 0, v{s2}
v_add_f32 v{s2}, {hx(f2u(1e-5))}, v{s2}
v_rsq_f32 v{rs}, v{s2}''')
stats_fin(c, 12, 14, 16, 17)
I(f'ds_write_b64 v7, v[16:17] offset:{L_ST1 - 131072}' if False else f'v_add_u32 v7, {L_ST1}, v7')
I('ds_write_b64 v7, v[16:17]')
c.cm('addresses for KV partial')
I(f'''v_and_b32 v2, 15, v0
v_lshrrev_b32 v4, 4, v0
v_mul_u32_u24 v18, {XS}, v2
v_lshl_add_u32 v18, v4, 4, v18
s_lshr_b32 {sT1}, {sHG}, 1
s_mul_i32 {sT1}, {sT1}, {16*XS}
s_lshl_b32 {sT2}, {sW}, 7
s_add_u32 {sT1}, {sT1}, {sT2}
v_add_u32 v19, {sT1}, v18
v_lshlrev_b32 v20, 8, v4
v_lshl_add_u32 v20, v2, 3, v20
s_lshl_b32 {sT2}, {sW}, 11
s_add_u32 {sT2}, {sT2}, {L_WKV}
v_add_u32 v20, {sT2}, v20
v_add_u32 v21, {sT2}, v1''')
c.wv('wkv'); c.wl0()
I('s_barrier')
stamp(c)
for s in range(2):
    I(f'ds_read_b128 v[{32+4*s}:{35+4*s}], v19 offset:{s*64}', tag='kx')
    I(f'ds_read_b64_tr_b16 v[{40+4*s}:{41+4*s}], v20 offset:{s*1024}', tag='kx')
    I(f'ds_read_b64_tr_b16 v[{42+4*s}:{43+4*s}], v20 offset:{s*1024+128}', tag='kx')
c.wl('kx')
I(f'''s_cmp_eq_u32 {sKIND}, 0
s_cbranch_scc0 L_kvp_v
v_mfma_f32_16x16x32_bf16 v[48:51], v[40:43], v[32:35], 0
v_mfma_f32_16x16x32_bf16 v[52:55], v[40:43], v[8:11], 0
v_mfma_f32_16x16x32_bf16 v[48:51], v[44:47], v[36:39], v[48:51]
v_mfma_f32_16x16x32_bf16 v[52:55], v[44:47], v[8:11], v[52:55]
s_branch L_kvp_e
L_kvp_v:
v_mfma_f32_16x16x32_bf16 v[48:51], v[32:35], v[40:43], 0
v_mfma_f32_16x16x32_bf16 v[52:55], v[8:11], v[40:43], 0
v_mfma_f32_16x16x32_bf16 v[48:51], v[36:39], v[44:47], v[48:51]
v_mfma_f32_16x16x32_bf16 v[52:55], v[8:11], v[44:47], v[52:55]
L_kvp_e:
ds_write_b128 v21, v[48:51]
ds_write_b128 v21, v[52:55] offset:1024''')
c.wv('epoch')
I(f'''v_readfirstlane_b32 {sTAG}, v31
s_mul_i32 {sTAG}, {sTAG}, 0x9E3779B1
s_add_u32 {sTAG}, {sTAG}, 0x7F4A7C15''')
c.wl0()
I('s_barrier')
c.cm('wave 0: reduce + publish K/V slice')
I(f'''s_cmp_lg_u32 {sW}, 0
s_cbranch_scc1 L_kv_skip''')
c.begin('w0kv')
I(f'v_add_u32 v21, {L_WKV}, v1')
for w in range(8):
    I(f'ds_read_b128 v[{32+8*w}:{35+8*w}], v21 offset:{w*2048}', tag=f'kr{w}')
    I(f'ds_read_b128 v[{36+8*w}:{39+8*w}], v21 offset:{w*2048+1024}', tag=f'kr{w}')
I(f'''s_lshr_b32 {sT1}, {sHG}, 1
s_lshl_b32 {sT2}, {sT1}, 7
s_add_u32 {sT2}, {sT2}, {L_ST1}
s_cmp_eq_u32 {sKIND}, 0
s_cselect_b32 {sT3}, 0, 8
v_lshlrev_b32 v22, 3, v2
v_lshlrev_b32 v23, 5, v4
s_cselect_b64 vcc, -1, 0
v_cndmask_b32 v22, v23, v22, vcc
v_add_u32 v22, {sT2}, v22
v_add_u32 v23, {sT3}, v22
v_add_u32 v24, {sT3}, v23
v_add_u32 v25, {sT3}, v24''')
for w in range(1, 8):
    c.wl(f'kr{w}')
    for j in range(8):
        I(f'v_add_f32 v{32+j}, v{32+j}, v{32+8*w+j}')
for i in range(4):
    I(f'ds_read_b64 v[{40+2*i}:{41+2*i}], v{22+i}', tag='kst')
I(f'''v_lshrrev_b32 v26, 1, v4
v_and_b32 v27, 1, v4
v_lshlrev_b32 v28, 9, v26
v_lshl_add_u32 v28, v27, 3, v28
v_lshlrev_b32 v29, 8, v27
v_lshl_add_u32 v29, v26, 3, v29
v_cndmask_b32 v28, v29, v28, vcc
v_lshl_add_u32 v28, v2, 4, v28
s_lshl_b32 {sT2}, {sTT0}, 1
s_add_u32 {sT2}, {sT2}, {sT1}
s_mul_i32 {sT3}, {sT2}, 528
s_add_u32 {sT3}, {sT3}, {WS_V}
s_lshr_b32 {sT0}, {sT2}, 1
s_lshl_b32 {sT0}, {sT0}, 10
s_and_b32 {sT4}, {sT2}, 1
s_lshl_b32 {sT4}, {sT4}, 8
s_add_u32 {sT0}, {sT0}, {sT4}
s_add_u32 {sT0}, {sT0}, {WS_K}
s_cmp_eq_u32 {sKIND}, 0
s_cselect_b32 {sT0}, {sT0}, {sT3}''')
c.wl('kst')
for i in range(4):
    I(f'v_fma_f32 v{32+i}, -v{40+2*i}, v{36+i}, v{32+i}')
for i in range(4):
    I(f'v_mul_f32 v{32+i}, v{32+i}, v{41+2*i}')
I(f'''v_cvt_pk_bf16_f32 v32, v32, v33
v_cvt_pk_bf16_f32 v33, v34, v35
buffer_store_dwordx2 v[32:33], v28, {SRD_WS}, {sT0} offen sc1
v_mov_b32 v29, 512
s_mov_b64 exec, 1
buffer_store_dwordx4 v[8:11], v29, {SRD_WS}, {sT3} offen sc1
s_mov_b64 exec, -1''')
c.wv('wq')
c.end()
I('s_branch L_kv_j\nL_kv_skip:')
c.begin('nw0'); c.wv('wq'); c.end()
I('L_kv_j:\ns_barrier')
stamp(c)
I(f'''s_cmp_lg_u32 {sW}, 0
s_cbranch_scc1 L_kvf_skip''')
c.begin('w0kf')
c.wv0()
I(f'''s_lshr_b32 {sT0}, {sHG}, 2
s_add_u32 {sT0}, {sT0}, {sTT0}
s_lshl_b32 {sT0}, {sT0}, 7
s_and_b32 {sT1}, {sHG}, 3
s_lshl_b32 {sT1}, {sT1}, 2
s_add_u32 {sT0}, {sT0}, {sT1}
s_add_u32 {sT0}, {sT0}, {WS_KVF}''')
flag_store(c, sT0, 22)
c.end()
I('L_kvf_skip:')

c.cm('Q projection: wave (tt=w&1, hd=w>>1)')
I(f'''s_and_b32 {sT0}, {sW}, 1
s_mul_i32 {sT1}, {sT0}, {32*XS}
v_add_u32 v19, {sT1}, v18
s_lshr_b32 {sT2}, {sW}, 1
v_lshrrev_b32 v22, 2, v2
v_lshl_add_u32 v22, v4, 3, v22
v_lshlrev_b32 v22, 7, v22
v_lshrrev_b32 v23, 3, v2
v_and_b32 v24, 1, v4
v_lshl_or_b32 v23, v24, 1, v23
v_xor_b32 v23, {sT2}, v23
v_lshl_add_u32 v22, v23, 5, v22
v_and_b32 v23, 3, v2
v_lshl_add_u32 v22, v23, 3, v22
v_add_u32 v22, {L_WQ}, v22
s_lshl_b32 {sT1}, {sT0}, 8
s_add_u32 {sT1}, {sT1}, {L_ST1}
v_lshlrev_b32 v23, 3, v2
v_add_u32 v23, {sT1}, v23''')
QB = 3
def qrd(s):
    b = 64 + 12 * (s % QB)
    I(f'ds_read_b64_tr_b16 v[{b}:{b+1}], v22 offset:{s*4096}', tag=f'q{s}')
    I(f'ds_read_b64_tr_b16 v[{b+2}:{b+3}], v22 offset:{s*4096+512}', tag=f'q{s}')
    I(f'ds_read_b128 v[{b+4}:{b+7}], v19 offset:{s*64}', tag=f'q{s}')
    I(f'ds_read_b128 v[{b+8}:{b+11}], v19 offset:{s*64+16*XS}', tag=f'q{s}')
qrd(0); qrd(1)
for s in range(16):
    if s + 2 < 16: qrd(s + 2)
    if s == 14:
        I('ds_read_b64 v[24:25], v23', tag='qst')
        I('ds_read_b64 v[26:27], v23 offset:128', tag='qst')
    c.wl(f'q{s}')
    b = 64 + 12 * (s % QB)
    cc = lambda r: '0' if s == 0 else f'v[{r}:{r+3}]'
    I(f'v_mfma_f32_16x16x32_bf16 v[32:35], v[{b}:{b+3}], v[{b+4}:{b+7}], {cc(32)}')
    I(f'v_mfma_f32_16x16x32_bf16 v[36:39], v[{b}:{b+3}], v[{b+8}:{b+11}], {cc(36)}')
    I(f'v_mfma_f32_16x16x32_bf16 v[40:43], v[{b}:{b+3}], v[8:11], {cc(40)}')
c.wl('qst')
QS = 0.25 * math.log2(math.e)
I(f'''v_mul_f32 v25, {hx(f2u(QS))}, v25
v_mul_f32 v27, {hx(f2u(QS))}, v27''')
for i in range(4):
    I(f'v_fma_f32 v{32+i}, -v24, v{40+i}, v{32+i}')
    I(f'v_fma_f32 v{36+i}, -v26, v{40+i}, v{36+i}')
for i in range(4):
    I(f'v_mul_f32 v{32+i}, v{32+i}, v25')
    I(f'v_mul_f32 v{36+i}, v{36+i}, v27')
vQ = 112
I(f'''v_cvt_pk_bf16_f32 v{vQ}, v32, v33
v_cvt_pk_bf16_f32 v{vQ+1}, v34, v35
v_cvt_pk_bf16_f32 v{vQ+2}, v36, v37
v_cvt_pk_bf16_f32 v{vQ+3}, v38, v39
v_permlane16_swap_b32 v{vQ}, v{vQ+2}
v_permlane16_swap_b32 v{vQ+1}, v{vQ+3}''')
stamp(c)
c.cm('wait for all K/V')
I(f'''s_cmp_lg_u32 {sW}, 1
s_cbranch_scc1 L_kvw_skip''')
c.begin('w1poll')
I(f'''v_lshlrev_b32 v22, 7, v0
v_add_u32 v22, {WS_KVF}, v22''')
poll(c, 'v22', 4, 24)
I(f'''s_cmp_lg_u32 s2, 0
s_cbranch_scc1 L_kvw_skip''')
flag_store(c, '0', 22)
c.end()
I('L_kvw_skip:')
c.wl0()
I('s_barrier')
stamp(c)
c.cm('P2: DMA K/V into LDS; piece p (1KB) handled by wave p%8')
I(f'''s_lshl_b32 {sT0}, {sW}, 10
s_add_u32 {sT1}, {sT0}, {WS_K}''')
def kvdma(off, tag):
    I(f's_add_u32 m0, {sT0}, {off}')
    I(f's_add_u32 {sT2}, {sT1}, {off}')
    I(f'buffer_load_dwordx4 v1, {SRD_WS}, {sT2} offen sc1 lds', tag=tag)
kvdma(0, 'kv0'); kvdma(65536, 'kv0')
for j in range(1, 8):
    kvdma(j * 8192, 'kv1'); kvdma(65536 + j * 8192, 'kv1')
I(f'''s_cmp_ge_u32 {sW}, 2
s_cbranch_scc1 L_kvd_skip''')
c.begin('kvtail'); kvdma(131072, 'kv2'); c.end()
I('L_kvd_skip:')
I(f'''v_and_b32 v2, 31, v0
v_lshrrev_b32 v4, 5, v0
v_lshlrev_b32 v3, 8, v4
v_lshl_add_u32 v3, v2, 4, v3
v_mov_b32 v5, 512
v_cmp_gt_u32 vcc, 16, v2
v_cndmask_b32 v3, v5, v3, vcc
v_add_u32 v3, {L_V}, v3''')
sSTG = 's67'
I(f'''v_lshrrev_b32 v5, 1, v0
v_mul_u32_u24 v5, 3584, v5
v_and_b32 v6, 1, v0
v_lshl_add_u32 v5, v6, 4, v5
s_mul_i32 {sT2}, {sM}, 224
s_lshl_b32 {sT3}, {sW}, 5
s_add_u32 {sT2}, {sT2}, {sT3}
s_lshl_b32 {sSTG}, {sW}, 12
s_add_u32 {sSTG}, {sSTG}, {L_STG}
s_cmp_eq_u32 {sW}, 7
s_cselect_b32 {sT2}, 0x10000000, {sT2}
s_cselect_b32 {sSTG}, 0x30000, {sSTG}
v_add_u32 v5, {sT2}, v5
v_and_b32 v6, 15, v0
v_lshlrev_b32 v6, 3, v6
v_lshl_add_u32 v6, v4, 7, v6
v_bfe_u32 v7, v0, 4, 1
v_lshl_add_u32 v6, v7, 10, v6
v_add_u32 v6, {sSTG}, v6''')
vS = [32, 48]; vP = 64; vO = 72; vK = [88, 92]; vV = [96, 104]
for i in range(16): I(f'v_mov_b32 v{vO+i}, 0')
c.wv('kv0')
I('s_barrier')
stamp(c)
def rdK(i): return Ins(f'ds_read_b128 v[{vK[i%2]}:{vK[i%2]+3}], v1 offset:{L_K + i*1024}', f'K{i}')
VSPLIT = 60
def rdV(i, t):
    off = (2 * i + t) * 528 - (VSPLIT * 2 * 528 if i >= VSPLIT else 0)
    b = vV[i % 2] + 4 * t
    return Ins(f'ds_read_b128 v[{b}:{b+3}], v3 offset:{off}', f'V{i}')
def qk(i): return Ins(f'v_mfma_f32_32x32x16_bf16 v[{vS[i%2]}:{vS[i%2]+15}], v[{vK[i%2]}:{vK[i%2]+3}], v[{vQ}:{vQ+3}], 0')
def pv(i, t):
    b = vV[i % 2] + 4 * t
    return Ins(f'v_mfma_f32_32x32x16_bf16 v[{vO}:{vO+15}], v[{b}:{b+3}], v[{vP+4*t}:{vP+4*t+3}], v[{vO}:{vO+15}]')
hooks = {i: Code() for i in range(64)}
h = hooks[4]; h.wv0(); h.I('s_barrier')
def stg_dma(j):
    k = Code(); b = (j % 2) * 2048
    k.I(f's_add_u32 m0, {sSTG}, {b}')
    k.I(f's_mov_b32 {sT2}, {j * 32 * 3584}')
    k.I(f'buffer_load_dwordx4 v5, {SRD_WG}, {sT2} offen lds', tag=f'sg{j}')
    k.I(f's_add_u32 m0, {sSTG}, {b + 1024}')
    k.I(f'buffer_load_dwordx4 v5, {SRD_WU}, {sT2} offen lds', tag=f'sg{j}')
    return k
def stg_rd(j):
    k = Code(); b = (j % 2) * 2048
    k.wv(f'sg{j}')
    for s in range(2):
        for rd in range(2):
            a = (2 * j + s) * 4 + rd * 2
            k.I(f'ds_read_b64_tr_b16 a[{a}:{a+1}], v6 offset:{b + s*512 + rd*256}', tag=f'sr{j}')
    return k
for j in range(16):
    t = 5 + 3 * j
    if j >= 2: hooks[t].wl(f'sr{j-2}')
    hooks[t].add(stg_dma(j))
    hooks[t + 5].add(stg_rd(j))
hooks[VSPLIT - 1].I(f'v_add_u32 v3, {VSPLIT*2*528}, v3')

c.items += [rdK(0), rdK(1), rdV(0, 0), rdV(0, 1)]
c.wl('K0'); c.items.append(qk(0))
for i in range(64):
    S = vS[i % 2]
    e = lambda j: I(f'v_exp_f32 v{S+j}, v{S+j}')
    cv = lambda j: I(f'v_cvt_pk_bf16_f32 v{vP+j}, v{S+2*j}, v{S+2*j+1}')
    if i + 1 < 64:
        c.wl(f'K{i+1}'); c.items.append(qk(i + 1))
    if i + 2 < 64: c.items.append(rdK(i + 2))
    c.add(hooks[i])
    e(0); e(1); e(2); e(3)
    if i > 0: c.items.append(pv(i - 1, 1))
    if i + 1 < 64: c.items += [rdV(i + 1, 0), rdV(i + 1, 1)]
    cv(0); e(4); cv(1); e(5); e(6); e(7); cv(2); e(8); cv(3); e(9); e(10)
    c.wl(f'V{i}'); c.items.append(pv(i, 0))
    e(11); cv(4); e(12); e(13); cv(5); e(14); e(15); cv(6); cv(7)
c.items.append(pv(63, 1))
stamp(c)
c.cm('normalise + publish o')
I(f'''s_and_b32 {sT0}, {sW}, 1
s_add_u32 {sT0}, {sT0}, {sTT0}
s_lshl_b32 {sT0}, {sT0}, 15
s_lshr_b32 {sT1}, {sW}, 1
s_lshl_b32 {sT2}, {sHG}, 2
s_add_u32 {sT1}, {sT1}, {sT2}
s_lshl_b32 {sT1}, {sT1}, 10
s_add_u32 {sT0}, {sT0}, {sT1}
s_add_u32 {sT0}, {sT0}, {WS_O}
v_rcp_f32 v32, v{vO+8}''')
for i in range(8): I(f'v_mul_f32 v{vO+i}, v{vO+i}, v32')
for i in range(4): I(f'v_cvt_pk_bf16_f32 v{36+i}, v{vO+2*i}, v{vO+2*i+1}')
I(f'buffer_store_dwordx4 v[36:39], v1, {SRD_WS}, {sT0} offen sc1', tag='ost')
c.wl0()
I('s_barrier')
c.cm('P3: DMA wo tile rows 64w+8i+(l>>3), chunk (l&7)^(4*((row>>1)&1))')
I(f'''v_lshrrev_b32 v8, 3, v0
v_lshlrev_b32 v8, 10, v8
v_and_b32 v9, 7, v0
v_lshrrev_b32 v10, 2, v0
v_and_b32 v10, 4, v10
v_xor_b32 v9, v9, v10
v_lshl_add_u32 v8, v9, 4, v8
s_lshl_b32 {sT1}, {sW}, 16
s_lshl_b32 {sT2}, {sHG}, 7
s_add_u32 {sT1}, {sT1}, {sT2}
s_lshl_b32 {sT2}, {sW}, 13''')
for i in range(8):
    I(f's_add_u32 m0, {sT2}, {L_WO + i * 1024}')
    I(f'buffer_load_dwordx4 v8, {SRD_WO}, {sT1} offen lds', tag='wo')
    if i < 7: I(f's_add_u32 {sT1}, {sT1}, 8192')
I(f'''s_and_b32 {sT0}, {sW}, 1
s_add_u32 {sT0}, {sT0}, {sTT0}
s_lshl_b32 {sT1}, {sT0}, 15
s_lshr_b32 {sT2}, {sW}, 1
s_lshl_b32 {sT3}, {sT2}, 5
s_add_u32 {sT1}, {sT1}, {sT3}
s_lshl_b32 {sT3}, {sHG}, 7
s_add_u32 {sT1}, {sT1}, {sT3}
v_lshlrev_b32 v10, 10, v2
v_lshl_add_u32 v10, v4, 3, v10''')
I(f'buffer_load_dwordx2 v[12:13], v10, {SRD_X}, {sT1} offen', tag='xr')
I(f'buffer_load_dwordx2 v[14:15], v10, {SRD_X}, {sT1} offen offset:16', tag='xr')
c.wv('ost')
I('s_barrier')
I(f'''s_cmp_lg_u32 {sW}, 0
s_cbranch_scc1 L_of_skip''')
c.begin('w0of')
I(f'''s_lshl_b32 {sT3}, {sWGP}, 7
s_add_u32 {sT3}, {sT3}, {WS_FLG + PH_O * 32768}''')
flag_store(c, sT3, 16)
c.end()
I('L_of_skip:')
I(f"""v_mov_b32 v16, {sONES}
v_mov_b32 v17, {sONES}
v_mov_b32 v18, {sONES}
v_mov_b32 v19, {sONES}""")
for s in range(32):
    I(f'v_mfma_f32_32x32x16_bf16 v[72:87], a[{4*s}:{4*s+3}], v[16:19], {"0" if s == 0 else "v[72:87]"}')
I(f"""v_and_b32 v9, 15, v0
v_lshrrev_b32 v10, 2, v9
v_lshl_add_u32 v10, v4, 2, v10
v_lshlrev_b32 v10, 7, v10
v_and_b32 v11, 3, v9
v_lshl_add_u32 v10, v11, 3, v10
v_lshl_add_u32 v10, v7, 5, v10
v_lshrrev_b32 v11, 3, v9
v_lshl_add_u32 v10, v11, 6, v10
s_lshl_b32 {sT3}, {sT2}, 14
v_add_u32 v20, {sT3}, v10
v_xor_b32 v21, 64, v20
v_add_u32 v11, {sSTG}, v1""")
for j in range(4):
    I(f'ds_write_b128 v11, v[{72+4*j}:{75+4*j}] offset:{j*1024}')
c.wv('wo')
I('s_barrier')
NA3 = 5
def a3rd(s):
    for ct in range(2):
        for rd in range(2):
            r = 32 + (s % NA3) * 8 + ct * 4 + rd * 2
            I(f'ds_read_b64_tr_b16 v[{r}:{r+1}], v{20+ct} offset:{L_WO + s*2048 + rd*1024}', tag=f'wa{s}')
for s in range(NA3): a3rd(s)
stamp(c)
c.cm('poll o flags of producers (tb, 2kq) and (tb, 2kq+1)')
I(f"""s_and_b32 {sT3}, {sWGP}, 0xf8
s_lshl_b32 {sT1}, {sT2}, 1
s_add_u32 {sT3}, {sT3}, {sT1}
s_lshl_b32 {sT3}, {sT3}, 7
s_add_u32 {sT3}, {sT3}, {WS_FLG + PH_O * 32768}
v_and_b32 v22, 1, v0
v_lshlrev_b32 v22, 7, v22
v_add_u32 v22, {sT3}, v22""")
poll(c, 'v22', 1, 23)
stamp(c)
oreg = [104, 108, 112, 116, 120, 124, 24, 28]
I(f"""s_lshl_b32 {sT1}, {sT0}, 15
s_lshl_b32 {sT3}, {sT2}, 13
s_add_u32 {sT1}, {sT1}, {sT3}
s_add_u32 {sT1}, {sT1}, {WS_O}
s_add_u32 {sT3}, {sT1}, 4096""")
for s in range(8):
    I(f'buffer_load_dwordx4 v[{oreg[s]}:{oreg[s]+3}], v1, {SRD_WS}, {sT1 if s < 4 else sT3} offen offset:{(s%4)*1024} sc1', tag=f'o{s}')
I(f"""s_and_b32 {sT1}, {sW}, 1
s_lshl_b32 {sT1}, {sT1}, 15
s_add_u32 {sT1}, {sT1}, {L_RED3}
s_lshl_b32 {sT3}, {sT2}, 11
s_add_u32 {sT3}, {sT3}, {sT1}
v_add_u32 v16, {sT3}, v1
s_lshl_b32 {sT3}, {sT2}, 13
s_add_u32 {sT3}, {sT3}, {sT1}
v_add_u32 v17, {sT3}, v1""")
for s in range(8):
    c.wv(f'o{s}'); c.wl(f'wa{s}')
    for ct in range(2):
        r = 32 + (s % NA3) * 8 + ct * 4; a = 72 + 16 * ct
        I(f'v_mfma_f32_32x32x16_bf16 v[{a}:{a+15}], v[{r}:{r+3}], v[{oreg[s]}:{oreg[s]+3}], {"0" if s == 0 else f"v[{a}:{a+15}]"}')
    if s + NA3 < 8: a3rd(s + NA3)
for d in range(4):
    for j in range(2):
        r = 72 + 8 * d + 4 * j
        I(f'ds_write_b128 v16, v[{r}:{r+3}] offset:{d*8192 + j*1024}')
c.wl0()
I('s_barrier')
for sk in range(4):
    for j in range(2):
        r = 32 + 8 * sk + 4 * j
        I(f'ds_read_b128 v[{r}:{r+3}], v17 offset:{sk*2048 + j*1024}', tag=f'r3{sk}')
c.wv('xr')
for j in range(4):
    I(f'v_lshlrev_b32 v{64+2*j}, 16, v{12+j}')
    I(f'v_and_b32 v{65+2*j}, {sHI}, v{12+j}')
for sk in range(4):
    c.wl(f'r3{sk}')
    for j in range(8): I(f'v_add_f32 v{64+j}, v{64+j}, v{32+8*sk+j}')
for j in range(4): I(f'v_cvt_pk_bf16_f32 v{12+j}, v{64+2*j}, v{65+2*j}')
I(f"""s_lshl_b32 {sT1}, {sT0}, 15
s_lshl_b32 {sT3}, {sHG}, 2
s_add_u32 {sT3}, {sT3}, {sT2}
s_lshl_b32 {sT3}, {sT3}, 10
s_add_u32 {sT1}, {sT1}, {sT3}
s_add_u32 {sT1}, {sT1}, {WS_H}""")
I(f'buffer_store_dwordx4 v[12:15], v1, {SRD_WS}, {sT1} offen sc1', tag='hst')
vCS = 96
for j in range(4):
    I(f'ds_read_b128 v[{vCS+4*j}:{vCS+3+4*j}], v11 offset:{j*1024}', tag='cs')
c.wv('hst'); c.wl0()
stamp(c)
I('s_barrier')
I(f"""s_cmp_lg_u32 {sW}, 0
s_cbranch_scc1 L_hf_skip""")
c.begin('w0hf')
I(f"""s_lshl_b32 {sT3}, {sWGP}, 7
s_add_u32 {sT3}, {sT3}, {WS_FLG + PH_H * 32768}""")
flag_store(c, sT3, 16)
I(f"""s_lshl_b32 {sT3}, {sG}, 11
s_add_u32 {sT3}, {sT3}, {WS_FLG + PH_H * 32768}
v_and_b32 v22, 15, v0
v_lshlrev_b32 v22, 7, v22
v_add_u32 v22, {sT3}, v22""")
poll(c, 'v22', 1, 23)
c.end()
I('L_hf_skip:\ns_barrier')
stamp(c)
c.cm('P4: DMA h tiles')
TORD = [0, 2, 1, 3]
I(f"""s_lshl_b32 {sT0}, {sW}, 12
s_lshl_b32 {sT1}, {sG}, 17
s_add_u32 {sT1}, {sT1}, {sT0}
s_add_u32 {sT1}, {sT1}, {WS_H}
s_mov_b32 {sC1}, {hx(f2u(-2*math.sqrt(2/math.pi)*math.log2(math.e)))}
s_mov_b32 {sC2}, {hx(f2u(-2*math.sqrt(2/math.pi)*math.log2(math.e)*0.044715))}""")
for t in TORD:
    I(f's_add_u32 m0, {sT0}, {L_H + t*32768}')
    I(f's_add_u32 {sT2}, {sT1}, {t*32768}')
    for j in range(4):
        I(f'buffer_load_dwordx4 v1, {SRD_WS}, {sT2} offen offset:{j*1024} sc1 lds', tag=f'h{t}')
I(f"""v_add_u32 v8, 0x10000, v1
v_lshlrev_b32 v9, 3, v2
v_add_u32 v9, {L_ST2}, v9
s_mul_i32 {sT0}, {sG}, {4*112*1024}
s_mul_i32 {sT1}, {sM}, 7
s_add_u32 {sT1}, {sT1}, {sW}
s_lshl_b32 {sT1}, {sT1}, 10
s_add_u32 {sT0}, {sT0}, {sT1}
s_add_u32 {sT0}, {sT0}, {WS_F}
v_mov_b32 v10, {sC1}""")
I(f"""v_lshrrev_b32 v16, 4, v0
s_lshl_b32 {sT1}, {sW}, 2
v_add_u32 v16, {sT1}, v16
v_and_b32 v17, 1, v0
v_lshl_add_u32 v17, v17, 5, v16
v_lshlrev_b32 v17, 4, v17
v_bfe_u32 v18, v0, 1, 1
v_lshl_add_u32 v17, v18, 3, v17
v_bfe_u32 v18, v0, 2, 2
v_lshl_add_u32 v17, v18, 10, v17
s_lshl_b32 {sT1}, {sHG}, 12
s_lshl_b32 {sT2}, {sTB}, 16
s_add_u32 {sT1}, {sT1}, {sT2}
v_add_u32 v17, {sT1}, v17""")
vACC = [32, 48]; vHB = 64; NHB = 4
def hrd(t, s, k, base=vHB, nb=NHB):
    r = base + 4 * (k % nb)
    return Ins(f'ds_read_b128 v[{r}:{r+3}], v{1 if t < 2 else 8} offset:{(t%2)*32768 + s*1024}', f'hf{t}_{s}')
def gu_main(ti):
    t = TORD[ti]; a = vACC[ti % 2]
    groups = []
    pre = [hrd(t, s, s) for s in range(NHB - 1)]
    for s in range(32):
        gq = []
        if s + NHB - 1 < 32: gq.append(hrd(t, s + NHB - 1, s + NHB - 1))
        gq.append(('wl', f'hf{t}_{s}'))
        r = vHB + 4 * (s % NHB)
        gq.append(Ins(f'v_mfma_f32_32x32x16_bf16 v[{a}:{a+15}], a[{4*s}:{4*s+3}], v[{r}:{r+3}], {"0" if s == 0 else f"v[{a}:{a+15}]"}'))
        groups.append(gq)
    return pre, groups
def gu_epi(ti):
    t = TORD[ti]; a = vACC[ti % 2]
    k = Code()
    k.I(f'ds_read_b64 v[20:21], v9 offset:{t*256}', tag=f'st{t}')
    k.wl(f'st{t}')
    T = 80
    for j in range(16): k.I(f'v_fma_f32 v{a+j}, -v20, v{vCS+j}, v{a+j}')
    for j in range(16): k.I(f'v_mul_f32 v{a+j}, v{a+j}, v21')
    for j in range(8): k.I(f'v_mul_f32 v{T+j}, v{a+j}, v{a+j}')
    for j in range(8): k.I(f'v_fma_f32 v{T+j}, v{T+j}, {sC2}, v10')
    for j in range(8): k.I(f'v_mul_f32 v{T+j}, v{T+j}, v{a+j}')
    for j in range(8): k.I(f'v_exp_f32 v{T+j}, v{T+j}')
    for j in range(8): k.I(f'v_mul_f32 v{a+j}, v{a+j}, v{a+8+j}')
    for j in range(8): k.I(f'v_add_f32 v{T+j}, 1.0, v{T+j}')
    for j in range(8): k.I(f'v_rcp_f32 v{T+j}, v{T+j}')
    for j in range(8): k.I(f'v_mul_f32 v{a+j}, v{a+j}, v{T+j}')
    for j in range(4): k.I(f'v_cvt_pk_bf16_f32 v{T+8+j}, v{a+2*j}, v{a+2*j+1}')
    k.I(f's_add_u32 {sT1}, {sT0}, {t*112*1024}')
    k.I(f'buffer_store_dwordx4 v[{T+8}:{T+11}], v1, {SRD_WS}, {sT1} offen sc1', tag=f'fst{t}')
    return [[x] for x in k.items]
I(f"""s_cmp_eq_u32 {sW}, 7
s_cbranch_scc1 L_gu_w7""")
c.begin('gu')
for ti in range(4):
    c.wv(f'h{TORD[ti]}')
    if ti >= 2: c.wv(f'fst{TORD[ti-2]}')
    I('s_barrier')
    if ti == 3:
        I('ds_read_b64 v[12:13], v17', tag='res')
        I('ds_read_b64 v[14:15], v17 offset:32768', tag='res')
    pre, groups = gu_main(ti)
    c.add(pre)
    c.add(interleave(groups, gu_epi(ti - 1) if ti else [], start=2, stop=30))
c.wv(f'fst{TORD[2]}')
I('s_barrier')
for gq in gu_epi(3): c.add(gq)
c.wv0(); c.wl0()
I('s_barrier')
c.end()
I('s_branch L_gu_j\nL_gu_w7:')
c.begin('gu7')
I(f"""v_mov_b32 v20, {sONES}
s_lshl_b32 {sT2}, {sWGP}, 7""")
def fflag(t):
    I(f's_add_u32 {sT3}, {sT2}, {WS_FLG + (PH_F + t) * 32768}')
    flag_store(c, sT3, 22)
for ti in range(4):
    t = TORD[ti]
    c.wv(f'h{t}')
    c.wl0()
    I('s_barrier')
    if ti >= 2: fflag(TORD[ti - 2])
    if ti == 3:
        I('ds_read_b64 v[12:13], v17', tag='res7')
        I('ds_read_b64 v[14:15], v17 offset:32768', tag='res7')
    for j in range(4): I(f'v_mov_b32 v{24+j}, 0')
    NB7 = 8
    for s in range(NB7 - 1): c.items.append(hrd(t, s, s, 32, NB7))
    for s in range(32):
        if s + NB7 - 1 < 32: c.items.append(hrd(t, s + NB7 - 1, s + NB7 - 1, 32, NB7))
        c.wl(f'hf{t}_{s}')
        for j in range(4):
            r = 32 + 4 * (s % NB7) + j
            I(f'v_dot2c_f32_bf16 v{24 + (j & 1)}, v{r}, v20')
            I(f'v_dot2c_f32_bf16 v{26 + (j & 1)}, v{r}, v{r}')
    I("""v_add_f32 v24, v24, v25
v_add_f32 v26, v26, v27
v_mov_b32 v25, v24
v_mov_b32 v27, v26
v_permlane32_swap_b32 v24, v25
v_permlane32_swap_b32 v26, v27
v_add_f32 v24, v24, v25
v_add_f32 v26, v26, v27""")
    stats_fin(c, 24, 26, 28, 29)
    I(f'ds_write_b64 v9, v[28:29] offset:{t*256}')
c.wl0()
I('s_barrier')
fflag(TORD[2])
I('s_barrier')
fflag(TORD[3])
c.end()
I('L_gu_j:')
stamp(c)
c.cm('P5: load Wd rows [224w,+224) x 128B via LDS in two rounds -> a[0:111]')
I(f"""v_lshrrev_b32 v8, 3, v0
v_lshlrev_b32 v8, 10, v8
v_and_b32 v9, 7, v0
v_lshrrev_b32 v10, 2, v0
v_and_b32 v10, 4, v10
v_xor_b32 v9, v9, v10
v_lshl_add_u32 v8, v9, 4, v8
s_mul_i32 {sT1}, {sW}, {224*1024}
s_lshl_b32 {sT2}, {sHG}, 7
s_add_u32 {sT1}, {sT1}, {sT2}
s_mul_i32 {sT2}, {sW}, 14336
v_and_b32 v9, 15, v0
v_lshrrev_b32 v10, 2, v9
v_lshl_add_u32 v10, v4, 2, v10
v_lshlrev_b32 v10, 7, v10
v_and_b32 v11, 3, v9
v_lshl_add_u32 v10, v11, 3, v10
v_lshl_add_u32 v10, v7, 5, v10
v_lshrrev_b32 v11, 3, v9
v_lshl_add_u32 v10, v11, 6, v10
v_add_u32 v20, {sT2}, v10
v_xor_b32 v21, 64, v20""")
for rnd in range(2):
    if rnd: c.wl0()
    for i in range(14):
        I(f's_add_u32 m0, {sT2}, {i * 1024}')
        I(f'buffer_load_dwordx4 v8, {SRD_WD}, {sT1} offen lds', tag=f'wd{rnd}_{i//2}')
        I(f's_add_u32 {sT1}, {sT1}, 8192')
    for s in range(7):
        c.wv(f'wd{rnd}_{s}')
        for ct in range(2):
            for rd in range(2):
                r = (rnd * 7 + s) * 8 + ct * 4 + rd * 2
                I(f'ds_read_b64_tr_b16 a[{r}:{r+1}], v{20+ct} offset:{s*2048 + rd*1024}', tag='wdr')
RS = 8448
I(f"""s_mul_i32 {sT2}, {sW}, {RS}
v_mul_u32_u24 v18, 528, v4
v_lshl_add_u32 v18, v2, 4, v18
v_add_u32 v18, {sT2}, v18
v_and_b32 v19, 15, v0
v_mul_u32_u24 v19, 528, v19
v_lshl_add_u32 v19, v16, 4, v19
v_and_b32 v22, 1, v0
v_lshlrev_b32 v22, 7, v22
v_lshlrev_b32 v24, 10, v16
v_and_b32 v25, 15, v0
v_lshl_add_u32 v24, v25, 3, v24""")
c.wl0()
I('s_barrier')
stamp(c)
for half in range(2):
    I(f"""s_lshl_b32 {sT0}, {sTB}, 1
s_add_u32 {sT0}, {sT0}, {half}
s_lshl_b32 {sT1}, {sT0}, 15
s_lshl_b32 {sT2}, {sG}, 4
s_lshl_b32 {sT3}, {sW}, 1
s_add_u32 {sT2}, {sT2}, {sT3}
s_lshl_b32 {sT2}, {sT2}, 7
s_add_u32 {sT1}, {sT1}, {sT2}
s_add_u32 {sT1}, {sT1}, {WS_FLG + PH_F * 32768}
v_add_u32 v23, {sT1}, v22""")
    poll(c, 'v23', 1, 26)
    I(f"""s_add_u32 {sT0}, {sTT0}, {half}
s_mul_i32 {sT1}, {sT0}, {112*1024}
s_mul_i32 {sT2}, {sW}, {14*1024}
s_add_u32 {sT1}, {sT1}, {sT2}
s_add_u32 {sT1}, {sT1}, {WS_F}""")
    for s in range(14):
        I(f'buffer_load_dwordx4 v[{64+4*s}:{67+4*s}], v1, {SRD_WS}, {sT1} offen offset:{(s%4)*1024} sc1', tag=f'f{half}_{s}')
        if s % 4 == 3: I(f's_add_u32 {sT1}, {sT1}, 4096')
    for s in range(14):
        c.wv(f'f{half}_{s}')
        for ct in range(2):
            a = 32 + 16 * ct; r = s * 8 + ct * 4
            I(f'v_mfma_f32_32x32x16_bf16 v[{a}:{a+15}], a[{r}:{r+3}], v[{64+4*s}:{67+4*s}], {"0" if s == 0 else f"v[{a}:{a+15}]"}')
    LB = half * 8 * RS
    if half == 1:
        I(f'v_add_u32 v18, {8*RS}, v18\nv_add_u32 v19, {8*RS}, v19')
    for ca in range(8):
        I(f'ds_write_b128 v18, v[{32+4*ca}:{35+4*ca}] offset:{ca*1056}')
    c.wl0()
    I('s_barrier')
    for sw in range(8):
        if sw == 7:
            I(f'v_add_u32 v27, {7*RS}, v19')
            I(f'ds_read_b128 v[{32+4*sw}:{35+4*sw}], v27', tag=f'r5{sw}')
        else:
            I(f'ds_read_b128 v[{32+4*sw}:{35+4*sw}], v19 offset:{sw*RS}', tag=f'r5{sw}')
    for j in range(2):
        I(f'v_lshlrev_b32 v{28+2*j}, 16, v{12+2*half+j}')
        I(f'v_and_b32 v{29+2*j}, {sHI}, v{12+2*half+j}')
    for sw in range(8):
        c.wl(f'r5{sw}')
        for j in range(4): I(f'v_add_f32 v{28+j}, v{28+j}, v{32+4*sw+j}')
    I(f"""v_cvt_pk_bf16_f32 v28, v28, v29
v_cvt_pk_bf16_f32 v29, v30, v31
s_lshl_b32 {sT1}, {sT0}, 15
s_lshl_b32 {sT2}, {sHG}, 7
s_add_u32 {sT1}, {sT1}, {sT2}""")
    I(f'buffer_store_dwordx2 v[28:29], v24, {SRD_OUT}, {sT1} offen')
    stamp(c)
if DEBUG:
    c.wv0()
    stamp(c)
    n = nstamp[0]
    I(f"""s_lshl_b32 {sT0}, s2, 3
s_add_u32 {sT0}, {sT0}, {sW}
s_lshl_b32 {sT0}, {sT0}, 7
s_add_u32 {sT0}, {sT0}, {WS_DBG}
s_mov_b64 exec, 1
v_mov_b32 v2, 0""")
    for k in range(n):
        I(f'v_mov_b32 v3, s{ST_BASE+k}')
        I(f'buffer_store_dword v3, v2, {SRD_WS}, {sT0} offen offset:{4*k}')
    I('s_memrealtime s[68:69]\ns_waitcnt lgkmcnt(0)\nv_mov_b32 v3, s68')
    I(f'buffer_store_dword v3, v2, {SRD_WS}, {sT0} offen offset:{4*31}')
I('L_exit:\ns_endpgm')

ins = pad(resolve(c.items), verbose='-v' in sys.argv)
hdr = open(f'cdna_kernels/{NAME}.s.ref').read().split('\n')
head = [l for l in hdr if l.startswith(';') and '@launch' not in l and 'Override' not in l and 'grid=ceil' not in l]
out = '\n'.join(head) + f"""
; @launch grid=(256,1,1) block=(512,1,1) lds={LDS_SIZE}
.amdgcn_target "amdgcn-amd-amdhsa--gfx950"
.text
.globl {NAME}_kernel
.p2align 8
.type {NAME}_kernel,@function
{NAME}_kernel:
""" + render(ins) + f""".section .rodata,"a"
.p2align 6
.amdhsa_kernel {NAME}_kernel
  .amdhsa_next_free_vgpr 256
  .amdhsa_next_free_sgpr 102
  .amdhsa_accum_offset 128
  .amdhsa_group_segment_fixed_size 0
  .amdhsa_kernarg_size 96
  .amdhsa_user_sgpr_count 2
  .amdhsa_user_sgpr_kernarg_segment_ptr 1
  .amdhsa_system_sgpr_workgroup_id_x 1
.end_amdhsa_kernel
"""
dst = [a for a in sys.argv[1:] if a.endswith('.s')]
open(dst[0] if dst else f'cdna_kernels/{NAME}.s', 'w').write(out)
print('instructions', len(ins), 'stamps', nstamp[0])
```

```python
import sys, math, struct
sys.path.insert(0, 'gen')
from asmlib import *

NAME = 'sequential_preLN__grouped_kv_mqa__geglu_ffn__prompt'
DEBUG = '--debug' in sys.argv
STOP = None
for a in sys.argv:
    if a.startswith('--stop='): STOP = a[7:]

def f2u(x): return struct.unpack('<I', struct.pack('<f', x))[0]
def hx(x): return hex(x & 0xffffffff)

WS_EPOCH = 0
WS_KVF   = 0x1000
WS_FLG   = 0x10000
WS_DBG   = 0x80000
WS_K     = 0x100000
WS_V     = WS_K + 65536
KV_BYTES = 65536 + 128 * 528
WS_O     = 0x200000
WS_H     = 0x400000
WS_F     = 0x600000
WS_SIZE  = 0xD00000
PH_O, PH_H, PH_F = 0, 1, 2

L_X = 0; XS = 1040
L_WQ = 66560
L_WKV = 132096
L_ST1 = 148480
L_K = 0; L_V = 65536
L_STG = KV_BYTES
L_WO = 0; L_RED3 = 65536
L_H = 0; L_ST2 = 131072
LDS_SIZE = 163840

SRD_X, SRD_WQ, SRD_WKV, SRD_WO, SRD_WG, SRD_WU, SRD_WD, SRD_OUT, SRD_WS = [f's[{i}:{i+3}]' for i in range(8, 44, 4)]
sW, sG, sM, sTB, sHG, sTAG, sROW0, sTT0, sKIND, sWGP = 's48', 's49', 's50', 's51', 's52', 's53', 's54', 's55', 's56', 's57'
sT0, sT1, sT2, sT3, sT4 = 's58', 's59', 's60', 's61', 's62'
sONES = 's63'; sHI = 's64'
sC1, sC2 = 's65', 's66'
ST_BASE = 70
nstamp = [0]

c = Code()
I = c.I

def stamp(code):
    if not DEBUG: return
    k = nstamp[0]; nstamp[0] += 1
    code.I(f's_memtime s[68:69]')
    code.wl0()
    code.I(f's_mov_b32 s{ST_BASE + k}, s68')

lblc = [0]
def newlbl(p):
    lblc[0] += 1; return f'L_{p}_{lblc[0]}'

def poll(code, voff, nd, vtmp):
    l0 = newlbl('poll'); l1 = newlbl('pdone')
    op = {1: 'dword', 2: 'dwordx2', 4: 'dwordx4'}[nd]
    dst = f'v{vtmp}' if nd == 1 else f'v[{vtmp}:{vtmp+nd-1}]'
    code.I(f's_mov_b32 {sT4}, 0x40000')
    code.I(f'{l0}:')
    code.I(f'buffer_load_{op} {dst}, {voff}, {SRD_WS}, 0 offen sc1')
    code.wv0()
    for i in range(nd):
        code.I(f'v_xor_b32 v{vtmp+i}, {sTAG}, v{vtmp+i}')
    for i in range(1, nd):
        code.I(f'v_or_b32 v{vtmp}, v{vtmp}, v{vtmp+i}')
    code.I(f'''v_cmp_ne_u32 vcc, 0, v{vtmp}
s_cbranch_vccz {l1}
s_sub_u32 {sT4}, {sT4}, 1
s_cmp_eq_u32 {sT4}, 0
s_cbranch_scc1 {l1}
s_sleep 2
s_branch {l0}
{l1}:''')

def flag_store(code, soff_expr_reg, vt):
    code.I(f'''v_mov_b32 v{vt}, {sTAG}
v_mov_b32 v{vt+1}, {soff_expr_reg}
s_mov_b64 exec, 1
buffer_store_dword v{vt}, v{vt+1}, {SRD_WS}, 0 offen sc1
s_mov_b64 exec, -1''')

if DEBUG: I('s_memrealtime s[96:97]\ns_memtime s[98:99]')
I(f'''s_cmp_ge_u32 s2, 256
s_cbranch_scc1 L_exit
s_load_dwordx16 s[72:87], s[0:1], 0
s_load_dwordx8 s[88:95], s[0:1], 64
v_lshrrev_b32 v2, 6, v0
v_and_b32 v0, 63, v0
v_readfirstlane_b32 {sW}, v2
v_lshlrev_b32 v1, 4, v0
s_and_b32 {sT0}, s2, 7
s_lshr_b32 {sT1}, s2, 3
s_lshr_b32 {sT2}, {sT1}, 4
s_lshl_b32 {sG}, {sT0}, 1
s_add_u32 {sG}, {sG}, {sT2}
s_and_b32 {sM}, {sT1}, 15
s_lshr_b32 {sTB}, {sM}, 3
s_and_b32 {sHG}, {sM}, 7
s_and_b32 {sKIND}, {sHG}, 1
s_lshl_b32 {sWGP}, {sG}, 4
s_add_u32 {sWGP}, {sWGP}, {sM}
s_lshl_b32 {sTT0}, {sG}, 2
s_lshl_b32 {sT0}, {sTB}, 1
s_add_u32 {sTT0}, {sTT0}, {sT0}
s_lshl_b32 {sROW0}, {sTT0}, 5
s_mov_b32 {sONES}, 0x3f803f80
s_mov_b32 {sHI}, 0xffff0000
''')
for i, sz in enumerate([2097152, 524288, 16384, 524288, 1835008, 1835008, 1835008, 2097152, WS_SIZE]):
    I(f's_mov_b32 s{8+4*i+2}, {hx(sz)}\ns_mov_b32 s{8+4*i+3}, 0x20000')
I('s_waitcnt lgkmcnt(0)')
I(f'''s_mov_b64 s[8:9], s[72:73]
s_mov_b64 s[40:41], s[94:95]
s_cmp_eq_u32 {sKIND}, 0
s_cselect_b64 s[16:17], s[76:77], s[78:79]
s_mov_b64 s[12:13], s[74:75]
s_mov_b64 s[20:21], s[80:81]
s_mov_b64 s[24:25], s[84:85]
s_mov_b64 s[28:29], s[86:87]
s_mov_b64 s[32:33], s[88:89]
s_mov_b64 s[36:37], s[90:91]
''')
stamp(c)
c.cm('P1: DMA x rows')
I(f'''s_lshl_b32 {sT0}, {sW}, 3
s_add_u32 {sT1}, {sROW0}, {sT0}
s_lshl_b32 {sT1}, {sT1}, 10
s_mul_i32 {sT2}, {sT0}, {XS}''')
for i in range(8):
    I(f's_add_u32 m0, {sT2}, {L_X + i * XS}')
    I(f'buffer_load_dwordx4 v1, {SRD_X}, {sT1} offen lds', tag='x')
    if i < 7: I(f's_add_u32 {sT1}, {sT1}, 1024')
c.cm('DMA wk/wv rows [64w,+64)')
I(f'''s_lshl_b32 {sT1}, {sW}, 11
s_add_u32 m0, {sT1}, {L_WKV}''')
I(f'buffer_load_dwordx4 v1, {SRD_WKV}, {sT1} offen lds', tag='wkv')
I(f'buffer_load_dwordx4 v1, {SRD_WKV}, {sT1} offen offset:1024 lds', tag='wkv')
c.cm('epoch')
I('v_mov_b32 v2, 0')
I(f'buffer_load_dword v31, v2, {SRD_WS}, 0 offen sc1', tag='epoch')
c.cm('DMA wq: rows 64w+8i+(l>>3), chunk (l&7)^(2f), f=((l>>4)&1)|((i&1)<<1)')
I(f'''v_lshrrev_b32 v2, 3, v0
v_lshlrev_b32 v2, 10, v2
v_and_b32 v3, 7, v0
v_lshrrev_b32 v4, 3, v0
v_and_b32 v4, 2, v4
v_xor_b32 v3, v3, v4
v_lshl_add_u32 v5, v3, 4, v2
v_xor_b32 v6, 64, v5
s_lshl_b32 {sT1}, {sW}, 16
s_lshl_b32 {sT2}, {sHG}, 7
s_add_u32 {sT1}, {sT1}, {sT2}
s_lshl_b32 {sT2}, {sW}, 13''')
for i in range(8):
    I(f's_add_u32 m0, {sT2}, {L_WQ + i * 1024}')
    I(f'buffer_load_dwordx4 v{5 + (i & 1)}, {SRD_WQ}, {sT1} offen lds', tag='wq')
    if i < 7: I(f's_add_u32 {sT1}, {sT1}, 8192')

c.cm('stats of own 8 rows: lane (r=l>>3, cc=l&7)')
I(f'''v_lshrrev_b32 v2, 3, v0
v_add_u32 v2, {sT0}, v2
v_mul_u32_u24 v3, {XS}, v2
v_and_b32 v4, 7, v0
v_lshl_add_u32 v3, v4, 4, v3
v_lshlrev_b32 v7, 3, v2
v_mov_b32 v8, {sONES}
v_mov_b32 v9, {sONES}
v_mov_b32 v10, {sONES}
v_mov_b32 v11, {sONES}
v_mov_b32 v12, 0
v_mov_b32 v13, 0
v_mov_b32 v14, 0
v_mov_b32 v15, 0''')
c.wv('x')
stamp(c)
for it in range(8):
    I(f'ds_read_b128 v[{32+4*it}:{35+4*it}], v3 offset:{L_X + it*128}', tag=f'st{it}')
for it in range(8):
    c.wl(f'st{it}')
    for j in range(4):
        r = 32 + 4 * it + j
        I(f'v_dot2c_f32_bf16 v{12 + (j & 1)}, v{r}, v8')
        I(f'v_dot2c_f32_bf16 v{14 + (j & 1)}, v{r}, v{r}')
I('''v_add_f32 v12, v12, v13
v_add_f32 v14, v14, v15''')
for m in ('quad_perm:[1,0,3,2]', 'quad_perm:[2,3,0,1]', 'row_half_mirror'):
    I(f'v_add_f32_dpp v12, v12, v12 {m} row_mask:0xf bank_mask:0xf')
    I(f'v_add_f32_dpp v14, v14, v14 {m} row_mask:0xf bank_mask:0xf')
def stats_fin(code, s1, s2, mu, rs):
    code.I(f'''v_mul_f32 v{mu}, {hx(f2u(1/512))}, v{s1}
v_mul_f32 v{s2}, {hx(f2u(1/512))}, v{s2}
v_fma_f32 v{s2}, -v{mu}, v{mu}, v{s2}
v_max_f32 v{s2}, 0, v{s2}
v_add_f32 v{s2}, {hx(f2u(1e-5))}, v{s2}
v_rsq_f32 v{rs}, v{s2}''')
stats_fin(c, 12, 14, 16, 17)
I(f'ds_write_b64 v7, v[16:17] offset:{L_ST1 - 131072}' if False else f'v_add_u32 v7, {L_ST1}, v7')
I('ds_write_b64 v7, v[16:17]')
c.cm('addresses for KV partial')
I(f'''v_and_b32 v2, 15, v0
v_lshrrev_b32 v4, 4, v0
v_mul_u32_u24 v18, {XS}, v2
v_lshl_add_u32 v18, v4, 4, v18
s_lshr_b32 {sT1}, {sHG}, 1
s_mul_i32 {sT1}, {sT1}, {16*XS}
s_lshl_b32 {sT2}, {sW}, 7
s_add_u32 {sT1}, {sT1}, {sT2}
v_add_u32 v19, {sT1}, v18
v_lshlrev_b32 v20, 8, v4
v_lshl_add_u32 v20, v2, 3, v20
s_lshl_b32 {sT2}, {sW}, 11
s_add_u32 {sT2}, {sT2}, {L_WKV}
v_add_u32 v20, {sT2}, v20
v_add_u32 v21, {sT2}, v1''')
c.wv('wkv'); c.wl0()
I('s_barrier')
stamp(c)
for s in range(2):
    I(f'ds_read_b128 v[{32+4*s}:{35+4*s}], v19 offset:{s*64}', tag='kx')
    I(f'ds_read_b64_tr_b16 v[{40+4*s}:{41+4*s}], v20 offset:{s*1024}', tag='kx')
    I(f'ds_read_b64_tr_b16 v[{42+4*s}:{43+4*s}], v20 offset:{s*1024+128}', tag='kx')
c.wl('kx')
I(f'''s_cmp_eq_u32 {sKIND}, 0
s_cbranch_scc0 L_kvp_v
v_mfma_f32_16x16x32_bf16 v[48:51], v[40:43], v[32:35], 0
v_mfma_f32_16x16x32_bf16 v[52:55], v[40:43], v[8:11], 0
v_mfma_f32_16x16x32_bf16 v[48:51], v[44:47], v[36:39], v[48:51]
v_mfma_f32_16x16x32_bf16 v[52:55], v[44:47], v[8:11], v[52:55]
s_branch L_kvp_e
L_kvp_v:
v_mfma_f32_16x16x32_bf16 v[48:51], v[32:35], v[40:43], 0
v_mfma_f32_16x16x32_bf16 v[52:55], v[8:11], v[40:43], 0
v_mfma_f32_16x16x32_bf16 v[48:51], v[36:39], v[44:47], v[48:51]
v_mfma_f32_16x16x32_bf16 v[52:55], v[8:11], v[44:47], v[52:55]
L_kvp_e:
ds_write_b128 v21, v[48:51]
ds_write_b128 v21, v[52:55] offset:1024''')
c.wv('epoch')
I(f'''v_readfirstlane_b32 {sTAG}, v31
s_mul_i32 {sTAG}, {sTAG}, 0x9E3779B1
s_add_u32 {sTAG}, {sTAG}, 0x7F4A7C15''')
c.wl0()
I('s_barrier')
c.cm('wave 0: reduce + publish K/V slice')
I(f'''s_cmp_lg_u32 {sW}, 0
s_cbranch_scc1 L_kv_skip''')
c.begin('w0kv')
I(f'v_add_u32 v21, {L_WKV}, v1')
for w in range(8):
    I(f'ds_read_b128 v[{32+8*w}:{35+8*w}], v21 offset:{w*2048}', tag=f'kr{w}')
    I(f'ds_read_b128 v[{36+8*w}:{39+8*w}], v21 offset:{w*2048+1024}', tag=f'kr{w}')
I(f'''s_lshr_b32 {sT1}, {sHG}, 1
s_lshl_b32 {sT2}, {sT1}, 7
s_add_u32 {sT2}, {sT2}, {L_ST1}
s_cmp_eq_u32 {sKIND}, 0
s_cselect_b32 {sT3}, 0, 8
v_lshlrev_b32 v22, 3, v2
v_lshlrev_b32 v23, 5, v4
s_cselect_b64 vcc, -1, 0
v_cndmask_b32 v22, v23, v22, vcc
v_add_u32 v22, {sT2}, v22
v_add_u32 v23, {sT3}, v22
v_add_u32 v24, {sT3}, v23
v_add_u32 v25, {sT3}, v24''')
for w in range(1, 8):
    c.wl(f'kr{w}')
    for j in range(8):
        I(f'v_add_f32 v{32+j}, v{32+j}, v{32+8*w+j}')
for i in range(4):
    I(f'ds_read_b64 v[{40+2*i}:{41+2*i}], v{22+i}', tag='kst')
I(f'''v_lshrrev_b32 v26, 1, v4
v_and_b32 v27, 1, v4
v_lshlrev_b32 v28, 9, v26
v_lshl_add_u32 v28, v27, 3, v28
v_lshlrev_b32 v29, 8, v27
v_lshl_add_u32 v29, v26, 3, v29
v_cndmask_b32 v28, v29, v28, vcc
v_lshl_add_u32 v28, v2, 4, v28
s_lshl_b32 {sT2}, {sTT0}, 1
s_add_u32 {sT2}, {sT2}, {sT1}
s_mul_i32 {sT3}, {sT2}, 528
s_add_u32 {sT3}, {sT3}, {WS_V}
s_lshr_b32 {sT0}, {sT2}, 1
s_lshl_b32 {sT0}, {sT0}, 10
s_and_b32 {sT4}, {sT2}, 1
s_lshl_b32 {sT4}, {sT4}, 8
s_add_u32 {sT0}, {sT0}, {sT4}
s_add_u32 {sT0}, {sT0}, {WS_K}
s_cmp_eq_u32 {sKIND}, 0
s_cselect_b32 {sT0}, {sT0}, {sT3}''')
c.wl('kst')
for i in range(4):
    I(f'v_fma_f32 v{32+i}, -v{40+2*i}, v{36+i}, v{32+i}')
for i in range(4):
    I(f'v_mul_f32 v{32+i}, v{32+i}, v{41+2*i}')
I(f'''v_cvt_pk_bf16_f32 v32, v32, v33
v_cvt_pk_bf16_f32 v33, v34, v35
buffer_store_dwordx2 v[32:33], v28, {SRD_WS}, {sT0} offen sc1
v_mov_b32 v29, 512
s_mov_b64 exec, 1
buffer_store_dwordx4 v[8:11], v29, {SRD_WS}, {sT3} offen sc1
s_mov_b64 exec, -1''')
c.wv('wq')
c.end()
I('s_branch L_kv_j\nL_kv_skip:')
c.begin('nw0'); c.wv('wq'); c.end()
I('L_kv_j:\ns_barrier')
stamp(c)
I(f'''s_cmp_lg_u32 {sW}, 0
s_cbranch_scc1 L_kvf_skip''')
c.begin('w0kf')
c.wv0()
I(f'''s_lshr_b32 {sT0}, {sHG}, 2
s_add_u32 {sT0}, {sT0}, {sTT0}
s_lshl_b32 {sT0}, {sT0}, 7
s_and_b32 {sT1}, {sHG}, 3
s_lshl_b32 {sT1}, {sT1}, 2
s_add_u32 {sT0}, {sT0}, {sT1}
s_add_u32 {sT0}, {sT0}, {WS_KVF}''')
flag_store(c, sT0, 22)
c.end()
I('L_kvf_skip:')

c.cm('Q projection: wave (tt=w&1, hd=w>>1)')
I(f'''s_and_b32 {sT0}, {sW}, 1
s_mul_i32 {sT1}, {sT0}, {32*XS}
v_add_u32 v19, {sT1}, v18
s_lshr_b32 {sT2}, {sW}, 1
v_lshrrev_b32 v22, 2, v2
v_lshl_add_u32 v22, v4, 3, v22
v_lshlrev_b32 v22, 7, v22
v_lshrrev_b32 v23, 3, v2
v_and_b32 v24, 1, v4
v_lshl_or_b32 v23, v24, 1, v23
v_xor_b32 v23, {sT2}, v23
v_lshl_add_u32 v22, v23, 5, v22
v_and_b32 v23, 3, v2
v_lshl_add_u32 v22, v23, 3, v22
v_add_u32 v22, {L_WQ}, v22
s_lshl_b32 {sT1}, {sT0}, 8
s_add_u32 {sT1}, {sT1}, {L_ST1}
v_lshlrev_b32 v23, 3, v2
v_add_u32 v23, {sT1}, v23''')
QB = 3
def qrd(s):
    b = 64 + 12 * (s % QB)
    I(f'ds_read_b64_tr_b16 v[{b}:{b+1}], v22 offset:{s*4096}', tag=f'q{s}')
    I(f'ds_read_b64_tr_b16 v[{b+2}:{b+3}], v22 offset:{s*4096+512}', tag=f'q{s}')
    I(f'ds_read_b128 v[{b+4}:{b+7}], v19 offset:{s*64}', tag=f'q{s}')
    I(f'ds_read_b128 v[{b+8}:{b+11}], v19 offset:{s*64+16*XS}', tag=f'q{s}')
qrd(0); qrd(1)
for s in range(16):
    if s + 2 < 16: qrd(s + 2)
    if s == 14:
        I('ds_read_b64 v[24:25], v23', tag='qst')
        I('ds_read_b64 v[26:27], v23 offset:128', tag='qst')
    c.wl(f'q{s}')
    b = 64 + 12 * (s % QB)
    cc = lambda r: '0' if s == 0 else f'v[{r}:{r+3}]'
    I(f'v_mfma_f32_16x16x32_bf16 v[32:35], v[{b}:{b+3}], v[{b+4}:{b+7}], {cc(32)}')
    I(f'v_mfma_f32_16x16x32_bf16 v[36:39], v[{b}:{b+3}], v[{b+8}:{b+11}], {cc(36)}')
    I(f'v_mfma_f32_16x16x32_bf16 v[40:43], v[{b}:{b+3}], v[8:11], {cc(40)}')
c.wl('qst')
QS = 0.25 * math.log2(math.e)
I(f'''v_mul_f32 v25, {hx(f2u(QS))}, v25
v_mul_f32 v27, {hx(f2u(QS))}, v27''')
for i in range(4):
    I(f'v_fma_f32 v{32+i}, -v24, v{40+i}, v{32+i}')
    I(f'v_fma_f32 v{36+i}, -v26, v{40+i}, v{36+i}')
for i in range(4):
    I(f'v_mul_f32 v{32+i}, v{32+i}, v25')
    I(f'v_mul_f32 v{36+i}, v{36+i}, v27')
vQ = 112
I(f'''v_cvt_pk_bf16_f32 v{vQ}, v32, v33
v_cvt_pk_bf16_f32 v{vQ+1}, v34, v35
v_cvt_pk_bf16_f32 v{vQ+2}, v36, v37
v_cvt_pk_bf16_f32 v{vQ+3}, v38, v39
v_permlane16_swap_b32 v{vQ}, v{vQ+2}
v_permlane16_swap_b32 v{vQ+1}, v{vQ+3}''')
stamp(c)
c.cm('wait for all K/V')
I(f'''s_cmp_lg_u32 {sW}, 1
s_cbranch_scc1 L_kvw_skip''')
c.begin('w1poll')
I(f'''v_lshlrev_b32 v22, 7, v0
v_add_u32 v22, {WS_KVF}, v22''')
poll(c, 'v22', 4, 24)
I(f'''s_cmp_lg_u32 s2, 0
s_cbranch_scc1 L_kvw_skip''')
flag_store(c, '0', 22)
c.end()
I('L_kvw_skip:')
c.wl0()
I('s_barrier')
stamp(c)
c.cm('P2: DMA K/V into LDS; piece p (1KB) handled by wave p%8')
I(f'''s_lshl_b32 {sT0}, {sW}, 10
s_add_u32 {sT1}, {sT0}, {WS_K}''')
def kvdma(off, tag):
    I(f's_add_u32 m0, {sT0}, {off}')
    I(f's_add_u32 {sT2}, {sT1}, {off}')
    I(f'buffer_load_dwordx4 v1, {SRD_WS}, {sT2} offen sc1 lds', tag=tag)
kvdma(0, 'kv0'); kvdma(65536, 'kv0')
for j in range(1, 8):
    kvdma(j * 8192, 'kv1'); kvdma(65536 + j * 8192, 'kv1')
I(f'''s_cmp_ge_u32 {sW}, 2
s_cbranch_scc1 L_kvd_skip''')
c.begin('kvtail'); kvdma(131072, 'kv2'); c.end()
I('L_kvd_skip:')
I(f'''v_and_b32 v2, 31, v0
v_lshrrev_b32 v4, 5, v0
v_lshlrev_b32 v3, 8, v4
v_lshl_add_u32 v3, v2, 4, v3
v_mov_b32 v5, 512
v_cmp_gt_u32 vcc, 16, v2
v_cndmask_b32 v3, v5, v3, vcc
v_add_u32 v3, {L_V}, v3''')
sSTG = 's67'
I(f'''v_lshrrev_b32 v5, 1, v0
v_mul_u32_u24 v5, 3584, v5
v_and_b32 v6, 1, v0
v_lshl_add_u32 v5, v6, 4, v5
s_mul_i32 {sT2}, {sM}, 224
s_lshl_b32 {sT3}, {sW}, 5
s_add_u32 {sT2}, {sT2}, {sT3}
s_lshl_b32 {sSTG}, {sW}, 12
s_add_u32 {sSTG}, {sSTG}, {L_STG}
s_cmp_eq_u32 {sW}, 7
s_cselect_b32 {sT2}, 0x10000000, {sT2}
s_cselect_b32 {sSTG}, 0x30000, {sSTG}
v_add_u32 v5, {sT2}, v5
v_and_b32 v6, 15, v0
v_lshlrev_b32 v6, 3, v6
v_lshl_add_u32 v6, v4, 7, v6
v_bfe_u32 v7, v0, 4, 1
v_lshl_add_u32 v6, v7, 10, v6
v_add_u32 v6, {sSTG}, v6''')
vS = [32, 48]; vP = 64; vO = 72; vK = [88, 92]; vV = [96, 104]
for i in range(16): I(f'v_mov_b32 v{vO+i}, 0')
c.wv('kv0')
I('s_barrier')
stamp(c)
def rdK(i): return Ins(f'ds_read_b128 v[{vK[i%2]}:{vK[i%2]+3}], v1 offset:{L_K + i*1024}', f'K{i}')
VSPLIT = 60
def rdV(i, t):
    off = (2 * i + t) * 528 - (VSPLIT * 2 * 528 if i >= VSPLIT else 0)
    b = vV[i % 2] + 4 * t
    return Ins(f'ds_read_b128 v[{b}:{b+3}], v3 offset:{off}', f'V{i}')
def qk(i): return Ins(f'v_mfma_f32_32x32x16_bf16 v[{vS[i%2]}:{vS[i%2]+15}], v[{vK[i%2]}:{vK[i%2]+3}], v[{vQ}:{vQ+3}], 0')
def pv(i, t):
    b = vV[i % 2] + 4 * t
    return Ins(f'v_mfma_f32_32x32x16_bf16 v[{vO}:{vO+15}], v[{b}:{b+3}], v[{vP+4*t}:{vP+4*t+3}], v[{vO}:{vO+15}]')
hooks = {i: Code() for i in range(64)}
h = hooks[4]; h.wv0(); h.I('s_barrier')
def stg_dma(j):
    k = Code(); b = (j % 2) * 2048
    k.I(f's_add_u32 m0, {sSTG}, {b}')
    k.I(f's_mov_b32 {sT2}, {j * 32 * 3584}')
    k.I(f'buffer_load_dwordx4 v5, {SRD_WG}, {sT2} offen lds', tag=f'sg{j}')
    k.I(f's_add_u32 m0, {sSTG}, {b + 1024}')
    k.I(f'buffer_load_dwordx4 v5, {SRD_WU}, {sT2} offen lds', tag=f'sg{j}')
    return k
def stg_rd(j):
    k = Code(); b = (j % 2) * 2048
    k.wv(f'sg{j}')
    for s in range(2):
        for rd in range(2):
            a = (2 * j + s) * 4 + rd * 2
            k.I(f'ds_read_b64_tr_b16 a[{a}:{a+1}], v6 offset:{b + s*512 + rd*256}', tag=f'sr{j}')
    return k
for j in range(16):
    t = 5 + 3 * j
    if j >= 2: hooks[t].wl(f'sr{j-2}')
    hooks[t].add(stg_dma(j))
    hooks[t + 5].add(stg_rd(j))
hooks[VSPLIT - 1].I(f'v_add_u32 v3, {VSPLIT*2*528}, v3')

c.items += [rdK(0), rdK(1), rdV(0, 0), rdV(0, 1)]
c.wl('K0'); c.items.append(qk(0))
for i in range(64):
    S = vS[i % 2]
    e = lambda j: I(f'v_exp_f32 v{S+j}, v{S+j}')
    cv = lambda j: I(f'v_cvt_pk_bf16_f32 v{vP+j}, v{S+2*j}, v{S+2*j+1}')
    if i + 1 < 64:
        c.wl(f'K{i+1}'); c.items.append(qk(i + 1))
    if i + 2 < 64: c.items.append(rdK(i + 2))
    c.add(hooks[i])
    e(0); e(1); e(2); e(3)
    if i > 0: c.items.append(pv(i - 1, 1))
    if i + 1 < 64: c.items += [rdV(i + 1, 0), rdV(i + 1, 1)]
    cv(0); e(4); cv(1); e(5); e(6); e(7); cv(2); e(8); cv(3); e(9); e(10)
    c.wl(f'V{i}'); c.items.append(pv(i, 0))
    e(11); cv(4); e(12); e(13); cv(5); e(14); e(15); cv(6); cv(7)
c.items.append(pv(63, 1))
stamp(c)
c.cm('normalise + publish o')
I(f'''s_and_b32 {sT0}, {sW}, 1
s_add_u32 {sT0}, {sT0}, {sTT0}
s_lshl_b32 {sT0}, {sT0}, 15
s_lshr_b32 {sT1}, {sW}, 1
s_lshl_b32 {sT2}, {sHG}, 2
s_add_u32 {sT1}, {sT1}, {sT2}
s_lshl_b32 {sT1}, {sT1}, 10
s_add_u32 {sT0}, {sT0}, {sT1}
s_add_u32 {sT0}, {sT0}, {WS_O}
v_rcp_f32 v32, v{vO+8}''')
for i in range(8): I(f'v_mul_f32 v{vO+i}, v{vO+i}, v32')
for i in range(4): I(f'v_cvt_pk_bf16_f32 v{36+i}, v{vO+2*i}, v{vO+2*i+1}')
I(f'buffer_store_dwordx4 v[36:39], v1, {SRD_WS}, {sT0} offen sc1', tag='ost')
c.wl0()
I('s_barrier')
c.cm('P3: DMA wo tile rows 64w+8i+(l>>3), chunk (l&7)^(4*((row>>1)&1))')
I(f'''v_lshrrev_b32 v8, 3, v0
v_lshlrev_b32 v8, 10, v8
v_and_b32 v9, 7, v0
v_lshrrev_b32 v10, 2, v0
v_and_b32 v10, 4, v10
v_xor_b32 v9, v9, v10
v_lshl_add_u32 v8, v9, 4, v8
s_lshl_b32 {sT1}, {sW}, 16
s_lshl_b32 {sT2}, {sHG}, 7
s_add_u32 {sT1}, {sT1}, {sT2}
s_lshl_b32 {sT2}, {sW}, 13''')
for i in range(8):
    I(f's_add_u32 m0, {sT2}, {L_WO + i * 1024}')
    I(f'buffer_load_dwordx4 v8, {SRD_WO}, {sT1} offen lds', tag='wo')
    if i < 7: I(f's_add_u32 {sT1}, {sT1}, 8192')
I(f'''s_and_b32 {sT0}, {sW}, 1
s_add_u32 {sT0}, {sT0}, {sTT0}
s_lshl_b32 {sT1}, {sT0}, 15
s_lshr_b32 {sT2}, {sW}, 1
s_lshl_b32 {sT3}, {sT2}, 5
s_add_u32 {sT1}, {sT1}, {sT3}
s_lshl_b32 {sT3}, {sHG}, 7
s_add_u32 {sT1}, {sT1}, {sT3}
v_lshlrev_b32 v10, 10, v2
v_lshl_add_u32 v10, v4, 3, v10''')
I(f'buffer_load_dwordx2 v[12:13], v10, {SRD_X}, {sT1} offen', tag='xr')
I(f'buffer_load_dwordx2 v[14:15], v10, {SRD_X}, {sT1} offen offset:16', tag='xr')
c.wv('ost')
I('s_barrier')
I(f'''s_cmp_lg_u32 {sW}, 0
s_cbranch_scc1 L_of_skip''')
c.begin('w0of')
I(f'''s_lshl_b32 {sT3}, {sWGP}, 7
s_add_u32 {sT3}, {sT3}, {WS_FLG + PH_O * 32768}''')
flag_store(c, sT3, 16)
c.end()
I('L_of_skip:')
I(f"""v_mov_b32 v16, {sONES}
v_mov_b32 v17, {sONES}
v_mov_b32 v18, {sONES}
v_mov_b32 v19, {sONES}""")
for s in range(32):
    I(f'v_mfma_f32_32x32x16_bf16 v[72:87], a[{4*s}:{4*s+3}], v[16:19], {"0" if s == 0 else "v[72:87]"}')
I(f"""v_and_b32 v9, 15, v0
v_lshrrev_b32 v10, 2, v9
v_lshl_add_u32 v10, v4, 2, v10
v_lshlrev_b32 v10, 7, v10
v_and_b32 v11, 3, v9
v_lshl_add_u32 v10, v11, 3, v10
v_lshl_add_u32 v10, v7, 5, v10
v_lshrrev_b32 v11, 3, v9
v_lshl_add_u32 v10, v11, 6, v10
s_lshl_b32 {sT3}, {sT2}, 14
v_add_u32 v20, {sT3}, v10
v_xor_b32 v21, 64, v20
v_add_u32 v11, {sSTG}, v1""")
for j in range(4):
    I(f'ds_write_b128 v11, v[{72+4*j}:{75+4*j}] offset:{j*1024}')
c.wv('wo')
I('s_barrier')
NA3 = 5
def a3rd(s):
    for ct in range(2):
        for rd in range(2):
            r = 32 + (s % NA3) * 8 + ct * 4 + rd * 2
            I(f'ds_read_b64_tr_b16 v[{r}:{r+1}], v{20+ct} offset:{L_WO + s*2048 + rd*1024}', tag=f'wa{s}')
for s in range(NA3): a3rd(s)
stamp(c)
c.cm('poll o flags of producers (tb, 2kq) and (tb, 2kq+1)')
I(f"""s_and_b32 {sT3}, {sWGP}, 0xf8
s_lshl_b32 {sT1}, {sT2}, 1
s_add_u32 {sT3}, {sT3}, {sT1}
s_lshl_b32 {sT3}, {sT3}, 7
s_add_u32 {sT3}, {sT3}, {WS_FLG + PH_O * 32768}
v_and_b32 v22, 1, v0
v_lshlrev_b32 v22, 7, v22
v_add_u32 v22, {sT3}, v22""")
poll(c, 'v22', 1, 23)
stamp(c)
oreg = [104, 108, 112, 116, 120, 124, 24, 28]
I(f"""s_lshl_b32 {sT1}, {sT0}, 15
s_lshl_b32 {sT3}, {sT2}, 13
s_add_u32 {sT1}, {sT1}, {sT3}
s_add_u32 {sT1}, {sT1}, {WS_O}
s_add_u32 {sT3}, {sT1}, 4096""")
for s in range(8):
    I(f'buffer_load_dwordx4 v[{oreg[s]}:{oreg[s]+3}], v1, {SRD_WS}, {sT1 if s < 4 else sT3} offen offset:{(s%4)*1024} sc1', tag=f'o{s}')
I(f"""s_and_b32 {sT1}, {sW}, 1
s_lshl_b32 {sT1}, {sT1}, 15
s_add_u32 {sT1}, {sT1}, {L_RED3}
s_lshl_b32 {sT3}, {sT2}, 11
s_add_u32 {sT3}, {sT3}, {sT1}
v_add_u32 v16, {sT3}, v1
s_lshl_b32 {sT3}, {sT2}, 13
s_add_u32 {sT3}, {sT3}, {sT1}
v_add_u32 v17, {sT3}, v1""")
for s in range(8):
    c.wv(f'o{s}'); c.wl(f'wa{s}')
    for ct in range(2):
        r = 32 + (s % NA3) * 8 + ct * 4; a = 72 + 16 * ct
        I(f'v_mfma_f32_32x32x16_bf16 v[{a}:{a+15}], v[{r}:{r+3}], v[{oreg[s]}:{oreg[s]+3}], {"0" if s == 0 else f"v[{a}:{a+15}]"}')
    if s + NA3 < 8: a3rd(s + NA3)
for d in range(4):
    for j in range(2):
        r = 72 + 8 * d + 4 * j
        I(f'ds_write_b128 v16, v[{r}:{r+3}] offset:{d*8192 + j*1024}')
c.wl0()
I('s_barrier')
for sk in range(4):
    for j in range(2):
        r = 32 + 8 * sk + 4 * j
        I(f'ds_read_b128 v[{r}:{r+3}], v17 offset:{sk*2048 + j*1024}', tag=f'r3{sk}')
c.wv('xr')
for j in range(4):
    I(f'v_lshlrev_b32 v{64+2*j}, 16, v{12+j}')
    I(f'v_and_b32 v{65+2*j}, {sHI}, v{12+j}')
for sk in range(4):
    c.wl(f'r3{sk}')
    for j in range(8): I(f'v_add_f32 v{64+j}, v{64+j}, v{32+8*sk+j}')
for j in range(4): I(f'v_cvt_pk_bf16_f32 v{12+j}, v{64+2*j}, v{65+2*j}')
I(f"""s_lshl_b32 {sT1}, {sT0}, 15
s_lshl_b32 {sT3}, {sHG}, 2
s_add_u32 {sT3}, {sT3}, {sT2}
s_lshl_b32 {sT3}, {sT3}, 10
s_add_u32 {sT1}, {sT1}, {sT3}
s_add_u32 {sT1}, {sT1}, {WS_H}""")
I(f'buffer_store_dwordx4 v[12:15], v1, {SRD_WS}, {sT1} offen sc1', tag='hst')
vCS = 96
for j in range(4):
    I(f'ds_read_b128 v[{vCS+4*j}:{vCS+3+4*j}], v11 offset:{j*1024}', tag='cs')
c.wv('hst'); c.wl0()
stamp(c)
I('s_barrier')
I(f"""s_cmp_lg_u32 {sW}, 0
s_cbranch_scc1 L_hf_skip""")
c.begin('w0hf')
I(f"""s_lshl_b32 {sT3}, {sWGP}, 7
s_add_u32 {sT3}, {sT3}, {WS_FLG + PH_H * 32768}""")
flag_store(c, sT3, 16)
I(f"""s_lshl_b32 {sT3}, {sG}, 11
s_add_u32 {sT3}, {sT3}, {WS_FLG + PH_H * 32768}
v_and_b32 v22, 15, v0
v_lshlrev_b32 v22, 7, v22
v_add_u32 v22, {sT3}, v22""")
poll(c, 'v22', 1, 23)
c.end()
I('L_hf_skip:\ns_barrier')
stamp(c)
c.cm('P4: DMA h tiles')
TORD = [0, 2, 1, 3]
I(f"""s_lshl_b32 {sT0}, {sW}, 12
s_lshl_b32 {sT1}, {sG}, 17
s_add_u32 {sT1}, {sT1}, {sT0}
s_add_u32 {sT1}, {sT1}, {WS_H}
s_mov_b32 {sC1}, {hx(f2u(-2*math.sqrt(2/math.pi)*math.log2(math.e)))}
s_mov_b32 {sC2}, {hx(f2u(-2*math.sqrt(2/math.pi)*math.log2(math.e)*0.044715))}""")
for t in TORD:
    I(f's_add_u32 m0, {sT0}, {L_H + t*32768}')
    I(f's_add_u32 {sT2}, {sT1}, {t*32768}')
    for j in range(4):
        I(f'buffer_load_dwordx4 v1, {SRD_WS}, {sT2} offen offset:{j*1024} sc1 lds', tag=f'h{t}')
I(f"""v_add_u32 v8, 0x10000, v1
v_lshlrev_b32 v9, 3, v2
v_add_u32 v9, {L_ST2}, v9
s_mul_i32 {sT0}, {sG}, {4*112*1024}
s_mul_i32 {sT1}, {sM}, 7
s_add_u32 {sT1}, {sT1}, {sW}
s_lshl_b32 {sT1}, {sT1}, 10
s_add_u32 {sT0}, {sT0}, {sT1}
s_add_u32 {sT0}, {sT0}, {WS_F}
v_mov_b32 v10, {sC1}""")
I(f"""v_lshrrev_b32 v16, 4, v0
s_lshl_b32 {sT1}, {sW}, 2
v_add_u32 v16, {sT1}, v16
v_and_b32 v17, 1, v0
v_lshl_add_u32 v17, v17, 5, v16
v_lshlrev_b32 v17, 4, v17
v_bfe_u32 v18, v0, 1, 1
v_lshl_add_u32 v17, v18, 3, v17
v_bfe_u32 v18, v0, 2, 2
v_lshl_add_u32 v17, v18, 10, v17
s_lshl_b32 {sT1}, {sHG}, 12
s_lshl_b32 {sT2}, {sTB}, 16
s_add_u32 {sT1}, {sT1}, {sT2}
v_add_u32 v17, {sT1}, v17""")
vACC = [32, 48]; vHB = 64; NHB = 4
def hrd(t, s, k, base=vHB, nb=NHB):
    r = base + 4 * (k % nb)
    return Ins(f'ds_read_b128 v[{r}:{r+3}], v{1 if t < 2 else 8} offset:{(t%2)*32768 + s*1024}', f'hf{t}_{s}')
def gu_main(ti):
    t = TORD[ti]; a = vACC[ti % 2]
    groups = []
    pre = [hrd(t, s, s) for s in range(NHB - 1)]
    for s in range(32):
        gq = []
        if s + NHB - 1 < 32: gq.append(hrd(t, s + NHB - 1, s + NHB - 1))
        gq.append(('wl', f'hf{t}_{s}'))
        r = vHB + 4 * (s % NHB)
        gq.append(Ins(f'v_mfma_f32_32x32x16_bf16 v[{a}:{a+15}], a[{4*s}:{4*s+3}], v[{r}:{r+3}], {"0" if s == 0 else f"v[{a}:{a+15}]"}'))
        groups.append(gq)
    return pre, groups
def gu_epi(ti):
    t = TORD[ti]; a = vACC[ti % 2]
    k = Code()
    k.I(f'ds_read_b64 v[20:21], v9 offset:{t*256}', tag=f'st{t}')
    k.wl(f'st{t}')
    T = 80
    for j in range(16): k.I(f'v_fma_f32 v{a+j}, -v20, v{vCS+j}, v{a+j}')
    for j in range(16): k.I(f'v_mul_f32 v{a+j}, v{a+j}, v21')
    for j in range(8): k.I(f'v_mul_f32 v{T+j}, v{a+j}, v{a+j}')
    for j in range(8): k.I(f'v_fma_f32 v{T+j}, v{T+j}, {sC2}, v10')
    for j in range(8): k.I(f'v_mul_f32 v{T+j}, v{T+j}, v{a+j}')
    for j in range(8): k.I(f'v_exp_f32 v{T+j}, v{T+j}')
    for j in range(8): k.I(f'v_mul_f32 v{a+j}, v{a+j}, v{a+8+j}')
    for j in range(8): k.I(f'v_add_f32 v{T+j}, 1.0, v{T+j}')
    for j in range(8): k.I(f'v_rcp_f32 v{T+j}, v{T+j}')
    for j in range(8): k.I(f'v_mul_f32 v{a+j}, v{a+j}, v{T+j}')
    for j in range(4): k.I(f'v_cvt_pk_bf16_f32 v{T+8+j}, v{a+2*j}, v{a+2*j+1}')
    k.I(f's_add_u32 {sT1}, {sT0}, {t*112*1024}')
    k.I(f'buffer_store_dwordx4 v[{T+8}:{T+11}], v1, {SRD_WS}, {sT1} offen sc1', tag=f'fst{t}')
    return [[x] for x in k.items]
I(f"""s_cmp_eq_u32 {sW}, 7
s_cbranch_scc1 L_gu_w7""")
c.begin('gu')
for ti in range(4):
    c.wv(f'h{TORD[ti]}')
    if ti >= 2: c.wv(f'fst{TORD[ti-2]}')
    I('s_barrier')
    if ti == 3:
        I('ds_read_b64 v[12:13], v17', tag='res')
        I('ds_read_b64 v[14:15], v17 offset:32768', tag='res')
    pre, groups = gu_main(ti)
    c.add(pre)
    c.add(interleave(groups, gu_epi(ti - 1) if ti else [], start=2, stop=30))
c.wv(f'fst{TORD[2]}')
I('s_barrier')
for gq in gu_epi(3): c.add(gq)
c.wv0(); c.wl0()
I('s_barrier')
c.end()
I('s_branch L_gu_j\nL_gu_w7:')
c.begin('gu7')
I(f"""v_mov_b32 v20, {sONES}
s_lshl_b32 {sT2}, {sWGP}, 7""")
def fflag(t):
    I(f's_add_u32 {sT3}, {sT2}, {WS_FLG + (PH_F + t) * 32768}')
    flag_store(c, sT3, 22)
for ti in range(4):
    t = TORD[ti]
    c.wv(f'h{t}')
    c.wl0()
    I('s_barrier')
    if ti >= 2: fflag(TORD[ti - 2])
    if ti == 3:
        I('ds_read_b64 v[12:13], v17', tag='res7')
        I('ds_read_b64 v[14:15], v17 offset:32768', tag='res7')
    for j in range(4): I(f'v_mov_b32 v{24+j}, 0')
    NB7 = 8
    for s in range(NB7 - 1): c.items.append(hrd(t, s, s, 32, NB7))
    for s in range(32):
        if s + NB7 - 1 < 32: c.items.append(hrd(t, s + NB7 - 1, s + NB7 - 1, 32, NB7))
        c.wl(f'hf{t}_{s}')
        for j in range(4):
            r = 32 + 4 * (s % NB7) + j
            I(f'v_dot2c_f32_bf16 v{24 + (j & 1)}, v{r}, v20')
            I(f'v_dot2c_f32_bf16 v{26 + (j & 1)}, v{r}, v{r}')
    I("""v_add_f32 v24, v24, v25
v_add_f32 v26, v26, v27
v_mov_b32 v25, v24
v_mov_b32 v27, v26
v_permlane32_swap_b32 v24, v25
v_permlane32_swap_b32 v26, v27
v_add_f32 v24, v24, v25
v_add_f32 v26, v26, v27""")
    stats_fin(c, 24, 26, 28, 29)
    I(f'ds_write_b64 v9, v[28:29] offset:{t*256}')
c.wl0()
I('s_barrier')
fflag(TORD[2])
I('s_barrier')
fflag(TORD[3])
c.end()
I('L_gu_j:')
stamp(c)
c.cm('P5: load Wd rows [224w,+224) x 128B via LDS in two rounds -> a[0:111]')
I(f"""v_lshrrev_b32 v8, 3, v0
v_lshlrev_b32 v8, 10, v8
v_and_b32 v9, 7, v0
v_lshrrev_b32 v10, 2, v0
v_and_b32 v10, 4, v10
v_xor_b32 v9, v9, v10
v_lshl_add_u32 v8, v9, 4, v8
s_mul_i32 {sT1}, {sW}, {224*1024}
s_lshl_b32 {sT2}, {sHG}, 7
s_add_u32 {sT1}, {sT1}, {sT2}
s_mul_i32 {sT2}, {sW}, 14336
v_and_b32 v9, 15, v0
v_lshrrev_b32 v10, 2, v9
v_lshl_add_u32 v10, v4, 2, v10
v_lshlrev_b32 v10, 7, v10
v_and_b32 v11, 3, v9
v_lshl_add_u32 v10, v11, 3, v10
v_lshl_add_u32 v10, v7, 5, v10
v_lshrrev_b32 v11, 3, v9
v_lshl_add_u32 v10, v11, 6, v10
v_add_u32 v20, {sT2}, v10
v_xor_b32 v21, 64, v20""")
for rnd in range(2):
    if rnd: c.wl0()
    for i in range(14):
        I(f's_add_u32 m0, {sT2}, {i * 1024}')
        I(f'buffer_load_dwordx4 v8, {SRD_WD}, {sT1} offen lds', tag=f'wd{rnd}_{i//2}')
        I(f's_add_u32 {sT1}, {sT1}, 8192')
    for s in range(7):
        c.wv(f'wd{rnd}_{s}')
        for ct in range(2):
            for rd in range(2):
                r = (rnd * 7 + s) * 8 + ct * 4 + rd * 2
                I(f'ds_read_b64_tr_b16 a[{r}:{r+1}], v{20+ct} offset:{s*2048 + rd*1024}', tag='wdr')
RS = 8448
I(f"""s_mul_i32 {sT2}, {sW}, {RS}
v_mul_u32_u24 v18, 528, v4
v_lshl_add_u32 v18, v2, 4, v18
v_add_u32 v18, {sT2}, v18
v_and_b32 v19, 15, v0
v_mul_u32_u24 v19, 528, v19
v_lshl_add_u32 v19, v16, 4, v19
v_and_b32 v22, 1, v0
v_lshlrev_b32 v22, 7, v22
v_lshlrev_b32 v24, 10, v16
v_and_b32 v25, 15, v0
v_lshl_add_u32 v24, v25, 3, v24""")
c.wl0()
I('s_barrier')
stamp(c)
for half in range(2):
    I(f"""s_lshl_b32 {sT0}, {sTB}, 1
s_add_u32 {sT0}, {sT0}, {half}
s_lshl_b32 {sT1}, {sT0}, 15
s_lshl_b32 {sT2}, {sG}, 4
s_lshl_b32 {sT3}, {sW}, 1
s_add_u32 {sT2}, {sT2}, {sT3}
s_lshl_b32 {sT2}, {sT2}, 7
s_add_u32 {sT1}, {sT1}, {sT2}
s_add_u32 {sT1}, {sT1}, {WS_FLG + PH_F * 32768}
v_add_u32 v23, {sT1}, v22""")
    poll(c, 'v23', 1, 26)
    I(f"""s_add_u32 {sT0}, {sTT0}, {half}
s_mul_i32 {sT1}, {sT0}, {112*1024}
s_mul_i32 {sT2}, {sW}, {14*1024}
s_add_u32 {sT1}, {sT1}, {sT2}
s_add_u32 {sT1}, {sT1}, {WS_F}""")
    for s in range(14):
        I(f'buffer_load_dwordx4 v[{64+4*s}:{67+4*s}], v1, {SRD_WS}, {sT1} offen offset:{(s%4)*1024} sc1', tag=f'f{half}_{s}')
        if s % 4 == 3: I(f's_add_u32 {sT1}, {sT1}, 4096')
    for s in range(14):
        c.wv(f'f{half}_{s}')
        for ct in range(2):
            a = 32 + 16 * ct; r = s * 8 + ct * 4
            I(f'v_mfma_f32_32x32x16_bf16 v[{a}:{a+15}], a[{r}:{r+3}], v[{64+4*s}:{67+4*s}], {"0" if s == 0 else f"v[{a}:{a+15}]"}')
    LB = half * 8 * RS
    if half == 1:
        I(f'v_add_u32 v18, {8*RS}, v18\nv_add_u32 v19, {8*RS}, v19')
    for ca in range(8):
        I(f'ds_write_b128 v18, v[{32+4*ca}:{35+4*ca}] offset:{ca*1056}')
    c.wl0()
    I('s_barrier')
    for sw in range(8):
        if sw == 7:
            I(f'v_add_u32 v27, {7*RS}, v19')
            I(f'ds_read_b128 v[{32+4*sw}:{35+4*sw}], v27', tag=f'r5{sw}')
        else:
            I(f'ds_read_b128 v[{32+4*sw}:{35+4*sw}], v19 offset:{sw*RS}', tag=f'r5{sw}')
    for j in range(2):
        I(f'v_lshlrev_b32 v{28+2*j}, 16, v{12+2*half+j}')
        I(f'v_and_b32 v{29+2*j}, {sHI}, v{12+2*half+j}')
    for sw in range(8):
        c.wl(f'r5{sw}')
        for j in range(4): I(f'v_add_f32 v{28+j}, v{28+j}, v{32+4*sw+j}')
    I(f"""v_cvt_pk_bf16_f32 v28, v28, v29
v_cvt_pk_bf16_f32 v29, v30, v31
s_lshl_b32 {sT1}, {sT0}, 15
s_lshl_b32 {sT2}, {sHG}, 7
s_add_u32 {sT1}, {sT1}, {sT2}""")
    I(f'buffer_store_dwordx2 v[28:29], v24, {SRD_OUT}, {sT1} offen')
    stamp(c)
if DEBUG:
    c.wv0()
    stamp(c)
    n = nstamp[0]
    I(f"""s_lshl_b32 {sT0}, s2, 3
s_add_u32 {sT0}, {sT0}, {sW}
s_lshl_b32 {sT0}, {sT0}, 7
s_add_u32 {sT0}, {sT0}, {WS_DBG}
s_mov_b64 exec, 1
v_mov_b32 v2, 0""")
    for k in range(n):
        I(f'v_mov_b32 v3, s{ST_BASE+k}')
        I(f'buffer_store_dword v3, v2, {SRD_WS}, {sT0} offen offset:{4*k}')
    I('s_memrealtime s[68:69]\ns_waitcnt lgkmcnt(0)\nv_mov_b32 v3, s68')
    I(f'buffer_store_dword v3, v2, {SRD_WS}, {sT0} offen offset:{4*31}')
    I(f'v_mov_b32 v3, s96')
    I(f'buffer_store_dword v3, v2, {SRD_WS}, {sT0} offen offset:{4*30}')
    I(f'v_mov_b32 v3, s98')
    I(f'buffer_store_dword v3, v2, {SRD_WS}, {sT0} offen offset:{4*29}')
    I(f'''s_cmp_lg_u32 s2, 77
s_cbranch_scc1 L_exit
s_cmp_lg_u32 {sW}, 4
s_cbranch_scc1 L_exit''')
    sel = list(range(n))[-15:] if n > 15 else list(range(n))
    if n > 15: sel = [0] + list(range(n))[-14:]
    for j, k in enumerate(sel):
        I(f's_sub_u32 {sT1}, s{ST_BASE+k}, s98\nv_mov_b32 v3, {sT1}')
        I(f'global_store_dword v2, v3, s[92:93] offset:{4*j}')
    I(f's_sub_u32 {sT1}, s68, s96\nv_mov_b32 v3, {sT1}')
    I(f'global_store_dword v2, v3, s[92:93] offset:60')
I('L_exit:\ns_endpgm')

ins = pad(resolve(c.items), verbose='-v' in sys.argv)
hdr = open(f'cdna_kernels/{NAME}.s.ref').read().split('\n')
head = [l for l in hdr if l.startswith(';') and '@launch' not in l and 'Override' not in l and 'grid=ceil' not in l]
out = '\n'.join(head) + f"""
; @launch grid=(256,1,1) block=(512,1,1) lds={LDS_SIZE}
.amdgcn_target "amdgcn-amd-amdhsa--gfx950"
.text
.globl {NAME}_kernel
.p2align 8
.type {NAME}_kernel,@function
{NAME}_kernel:
""" + render(ins) + f""".section .rodata,"a"
.p2align 6
.amdhsa_kernel {NAME}_kernel
  .amdhsa_next_free_vgpr 256
  .amdhsa_next_free_sgpr 102
  .amdhsa_accum_offset 128
  .amdhsa_group_segment_fixed_size 0
  .amdhsa_kernarg_size 96
  .amdhsa_user_sgpr_count 2
  .amdhsa_user_sgpr_kernarg_segment_ptr 1
  .amdhsa_system_sgpr_workgroup_id_x 1
.end_amdhsa_kernel
"""
dst = [a for a in sys.argv[1:] if a.endswith('.s')]
open(dst[0] if dst else f'cdna_kernels/{NAME}.s', 'w').write(out)
print('instructions', len(ins), 'stamps', nstamp[0])
```
